```python
import torch

def _softmax(x, axis=-1):
    return torch.softmax(x, dim=axis)
def _gelu(x):
    return torch.nn.functional.gelu(x, approximate="tanh")
def _silu(x):
    return torch.nn.functional.silu(x)
def _sigmoid(x):
    return torch.sigmoid(x)
def _layernorm(x, axis=-1, eps=1e-5):
    m = x.mean(dim=axis, keepdim=True)
    v = x.var(dim=axis, keepdim=True, unbiased=False)
    return (x - m) / torch.sqrt(v + eps)
def _scatter_add(tgt, idx, src, axis=0):
    return tgt.clone().index_add_(axis, idx, src)
def _segment_sum(src, seg, n):
    out = torch.zeros((n,) + src.shape[1:], dtype=src.dtype)
    return out.index_add_(0, seg, src)
def _pad(x, pw):
    flat = tuple(v for pair in reversed(pw) for v in pair)
    return torch.nn.functional.pad(x, flat)

kernel_name = 'recurrent_scan__sliding_local_dilated__dense_activation_silu__prompt'

def setup_inputs():

    _w = (lambda a: (lambda t: t.to(torch.bfloat16) if t.is_floating_point() else t)(torch.as_tensor(a)))
    def _A_setup():
        B, S, D = 1, 2048, 640
        return {
            "x": _w((lambda *s: torch.randn(*s, dtype=torch.bfloat16) * 0.05)(B, S, D)),
            "wqkv": _w((lambda *s: torch.randn(*s, dtype=torch.bfloat16) * 0.2)(D, 3 * D)),
            "wo": _w((lambda *s: torch.randn(*s, dtype=torch.bfloat16) * 0.2)(D, D)),
        }
    _A_in = _A_setup()

    def _B_setup():
        B, S, D, F = 1, 2048, 640, 1536
        return {
            "x": _w((lambda *s: torch.randn(*s, dtype=torch.bfloat16) * 0.05)(B, S, D)),
            "w1": _w((lambda *s: torch.randn(*s, dtype=torch.bfloat16) * 0.8)(D, F) * (D ** -0.5)),
            "w2": _w((lambda *s: torch.randn(*s, dtype=torch.bfloat16) * 0.1)(F, D) * (F ** -0.5)),
        }
    _B_in = _B_setup()

    return {
        "A_x": _A_in["x"],
        "A_wqkv": _A_in["wqkv"],
        "A_wo": _A_in["wo"],
        "B_x": _B_in["x"],
        "B_w1": _B_in["w1"],
        "B_w2": _B_in["w2"],
    }

def reference(A_x, A_wqkv, A_wo, B_x, B_w1, B_w2):
    def _A_ref(x, wqkv, wo):
        B, S, D = x.shape
        H = 32; Dh = D // H
        W, dil = 8, 2
        qkv = (lambda x, *d: x.permute(*d))((x @ wqkv).reshape(B, S, 3, H, Dh), 2, 0, 3, 1, 4)
        q, k, v = qkv[0], qkv[1], qkv[2]
        scale = Dh ** -0.5
        pos = torch.arange(S)
        off = torch.arange(W) * dil
        idx = pos[:, None] - off[None, :]
        mask = idx >= 0
        idx_c = torch.where(mask, idx, 0).reshape(-1)
        kg = k[:, :, idx_c, :].reshape(B, H, S, W, Dh)
        vg = v[:, :, idx_c, :].reshape(B, H, S, W, Dh)
        logits = torch.einsum("bhsd,bhswd->bhsw", q, kg) * scale
        logits = torch.where(mask[None, None, :, :], logits, -1e9)
        attn = _softmax(logits, axis=-1)
        o = torch.einsum("bhsw,bhswd->bhsd", attn, vg)
        return (lambda x, *d: x.permute(*d))(o, 0, 2, 1, 3).reshape(B, S, D) @ wo

    def _B_ref(x, w1, w2):
        h = torch.einsum("bsd,df->bsf", x, w1)
        h = _silu(h)
        out = torch.einsum("bsf,fd->bsd", h, w2)
        return out

    x = A_x
    xn = _layernorm(x, axis=-1)
    s = _A_ref(xn, A_wqkv, A_wo)
    g = _silu(_B_ref(xn, B_w1, B_w2))
    return x + s * g
```

```python
import sys
PERT = float(sys.argv[2]) if len(sys.argv) > 2 else 0.0
EXTRA = int(sys.argv[3]) if len(sys.argv) > 3 else 0
L = []
def e(s=""): L.append(s)
XN_OFF = 0
QKV_OFF = 4 << 20
H_OFF = 16 << 20
O_OFF = 24 << 20
hdr = """; naive
; @launch kernel=ln_kernel grid=(512,1,1) block=(256,1,1) lds=0
; @launch kernel=g1_kernel grid=(6912,1,1) block=(128,1,1) lds=0
; @launch kernel=at_kernel grid=(256,1,1) block=(256,1,1) lds=0
; @launch kernel=g2_kernel grid=(1280,1,1) block=(128,1,1) lds=0
"""
for i in range(EXTRA):
    hdr += "; @launch kernel=nop_kernel grid=(256,1,1) block=(256,1,1) lds=0\n"
e(hdr + '.amdgcn_target "amdgcn-amd-amdhsa--gfx950"\n.text')
def kstart(n):
    e(f".globl {n}\n.p2align 8\n.type {n},@function\n{n}:")
def srd(d, lo, nbytes):
    e(f"s_mov_b32 s{d}, s{lo}\ns_and_b32 s{d+1}, s{lo+1}, 0xffff\ns_mov_b32 s{d+2}, {nbytes}\ns_mov_b32 s{d+3}, 0x20000")
def srd_off(d, lo, off, nbytes):
    e(f"s_add_u32 s{d}, s{lo}, {off}\ns_addc_u32 s{d+1}, s{lo+1}, 0\ns_and_b32 s{d+1}, s{d+1}, 0xffff\ns_mov_b32 s{d+2}, {nbytes}\ns_mov_b32 s{d+3}, 0x20000")
def wave_sum(v, t):
    for x in (1,2,4,8,16,32):
        e(f"v_xor_b32 v{t}, {x}, v60\nv_lshlrev_b32 v{t}, 2, v{t}\nds_bpermute_b32 v{t+1}, v{t}, v{v}\ns_waitcnt lgkmcnt(0)\nv_add_f32 v{v}, v{v}, v{t+1}")
def round_bf16(d, s):
    e(f"v_cvt_pk_bf16_f32 v{d}, v{s}, v{s}\nv_and_b32 v{d}, 0xffff0000, v{d}")

kstart("ln_kernel")
e("s_cmp_ge_u32 s2, 512\ns_cbranch_scc1 ln_done")
e("s_load_dwordx2 s[4:5], s[0:1], 0\ns_load_dwordx2 s[6:7], s[0:1], 64\ns_waitcnt lgkmcnt(0)")
srd(8, 4, 2621440); srd_off(12, 6, XN_OFF, 2621440)
e("v_and_b32 v60, 63, v0\nv_lshrrev_b32 v1, 6, v0\ns_lshl_b32 s3, s2, 2\nv_add_u32 v1, s3, v1")
e("s_movk_i32 s16, 1280\nv_mul_lo_u32 v1, v1, s16\nv_lshl_add_u32 v1, v60, 2, v1")
for i in range(5): e(f"buffer_load_dword v{2+i}, v1, s[8:11], 0 offen offset:{256*i}")
e("s_waitcnt vmcnt(0)")
for i in range(5):
    e(f"v_lshlrev_b32 v{10+2*i}, 16, v{2+i}\nv_and_b32 v{11+2*i}, 0xffff0000, v{2+i}")
e("v_mov_b32 v20, 0")
for i in range(10): e(f"v_add_f32 v20, v20, v{10+i}")
wave_sum(20, 30)
e("v_mul_f32 v20, 0x3acccccd, v20")
e("v_mov_b32 v21, 0")
for i in range(10): e(f"v_sub_f32 v22, v{10+i}, v20\nv_fmac_f32 v21, v22, v22")
wave_sum(21, 30)
e("v_mul_f32 v21, 0x3acccccd, v21")
round_bf16(20, 20)
round_bf16(21, 21)
e("v_add_f32 v21, 0x3727c5ac, v21")
round_bf16(21, 21)
e("v_sqrt_f32 v21, v21\ns_nop 0")
round_bf16(21, 21)
e("v_rcp_f32 v21, v21\ns_nop 0")
for i in range(10):
    e(f"v_sub_f32 v{10+i}, v{10+i}, v20")
    round_bf16(10+i, 10+i)
    e(f"v_mul_f32 v{10+i}, v{10+i}, v21")
for i in range(5):
    e(f"v_cvt_pk_bf16_f32 v{2+i}, v{10+2*i}, v{11+2*i}")
for i in range(5): e(f"buffer_store_dword v{2+i}, v1, s[12:15], 0 offen offset:{256*i}")
e("ln_done:\ns_endpgm")

def naive_gemm(tag, K, a_stride, w_stride, sA, sW, vWoff, acc0):
    for r in range(8): e(f"v_mov_b32 v{acc0+r}, 0")
    e(f"s_mov_b32 s40, 0\ns_mov_b32 s41, 0")
    e(f"{tag}_loop:")
    for r in range(8):
        e(f"s_add_u32 s42, s40, {r*a_stride}")
        e(f"s_load_dwordx4 s[{48+4*r}:{51+4*r}], s[{sA}:{sA+1}], s42")
    for kk in range(8):
        e(f"s_add_u32 s42, s41, {kk*w_stride}")
        e(f"buffer_load_ushort v{20+kk}, v{vWoff}, s[{sW}:{sW+3}], s42 offen")
    e("s_waitcnt vmcnt(0) lgkmcnt(0)")
    for kk in range(8): e(f"v_lshlrev_b32 v{20+kk}, 16, v{20+kk}")
    for r in range(8):
        for kk in range(8):
            s = 48+4*r+kk//2
            if kk % 2 == 0: e(f"s_lshl_b32 s43, s{s}, 16")
            else: e(f"s_and_b32 s43, s{s}, 0xffff0000")
            e(f"v_fmac_f32 v{acc0+r}, s43, v{20+kk}")
    e(f"s_add_u32 s40, s40, 16\ns_add_u32 s41, s41, {8*w_stride}\ns_cmp_lt_u32 s40, {K*2}\ns_cbranch_scc1 {tag}_loop")

def silu(d, s, t):
    e(f"v_mul_f32 v{t}, 0xbfb8aa3b, v{s}\nv_exp_f32 v{t}, v{t}\ns_nop 0\nv_add_f32 v{t}, 1.0, v{t}\nv_rcp_f32 v{t}, v{t}\ns_nop 0\nv_mul_f32 v{d}, v{s}, v{t}")

kstart("g1_kernel")
e("s_cmp_ge_u32 s2, 6912\ns_cbranch_scc1 g1_done")
e("s_load_dwordx2 s[4:5], s[0:1], 8\ns_load_dwordx2 s[6:7], s[0:1], 32\ns_load_dwordx2 s[8:9], s[0:1], 64\ns_waitcnt lgkmcnt(0)")
e("s_mov_b32 s20, 0x97b425f\ns_mul_hi_u32 s21, s2, s20\ns_mul_i32 s22, s21, 27\ns_sub_u32 s22, s2, s22")
e("s_mul_i32 s23, s21, 10240\ns_add_u32 s24, s8, s23\ns_addc_u32 s25, s9, 0")
e("s_cmp_ge_u32 s22, 15\ns_cbranch_scc1 g1_ffn")
srd(12, 4, 640*1920*2)
e("s_lshl_b32 s26, s22, 8\nv_lshl_add_u32 v1, v0, 1, s26")
naive_gemm("g1a", 640, 1280, 3840, 24, 12, 1, 40)
srd_off(16, 8, QKV_OFF, 2048*1920*2)
e("s_mul_i32 s27, s21, 30720\nv_add_u32 v1, s27, v1")
for r in range(8):
    e(f"v_cvt_pk_bf16_f32 v2, v{40+r}, v{40+r}\ns_mov_b32 s28, {r*3840}\nbuffer_store_short v2, v1, s[16:19], s28 offen\ns_nop 1")
e("s_endpgm")
e("g1_ffn:")
srd(12, 6, 640*1536*2)
e("s_sub_u32 s22, s22, 15\ns_lshl_b32 s26, s22, 8\nv_lshl_add_u32 v1, v0, 1, s26")
naive_gemm("g1b", 640, 1280, 3072, 24, 12, 1, 40)
srd_off(16, 8, H_OFF, 2048*1536*2)
e("s_mul_i32 s27, s21, 24576\nv_add_u32 v1, s27, v1")
for r in range(8):
    round_bf16(3, 40+r); silu(3, 3, 4)
    e(f"v_cvt_pk_bf16_f32 v2, v3, v3\ns_mov_b32 s28, {r*3072}\nbuffer_store_short v2, v1, s[16:19], s28 offen\ns_nop 1")
e("g1_done:\ns_endpgm")

kstart("at_kernel")
e("s_cmp_ge_u32 s2, 256\ns_cbranch_scc1 at_done")
e("s_load_dwordx2 s[4:5], s[0:1], 64\ns_waitcnt lgkmcnt(0)")
srd_off(8, 4, QKV_OFF, 2048*1920*2); srd_off(12, 4, O_OFF, 2048*640*2)
e("s_lshl_b32 s3, s2, 8\nv_add_u32 v0, s3, v0\nv_lshrrev_b32 v1, 5, v0\nv_and_b32 v2, 31, v0")
e("s_movk_i32 s16, 3840\nv_mul_lo_u32 v3, v1, s16\nv_mul_u32_u24 v4, 40, v2\nv_add_u32 v3, v3, v4")
def load20(dst, voff, imm):
    for i in range(5): e(f"buffer_load_dwordx2 v[{dst+2*i}:{dst+2*i+1}], v{voff}, s[8:11], 0 offen offset:{imm+8*i}")
def unpack20(dst, src):
    for i in range(10): e(f"v_lshlrev_b32 v{dst+2*i}, 16, v{src+i}\nv_and_b32 v{dst+2*i+1}, 0xffff0000, v{src+i}")
load20(10, 3, 0); e("s_waitcnt vmcnt(0)"); unpack20(20, 10)
for w in range(8):
    e(f"v_subrev_u32 v5, {2*w}, v1\nv_max_i32 v5, 0, v5\nv_mul_lo_u32 v5, v5, s16\nv_add_u32 v5, v5, v4")
    load20(10, 5, 1280); e("s_waitcnt vmcnt(0)"); unpack20(40, 10)
    e(f"v_mov_b32 v{70+w}, 0")
    for d in range(20): e(f"v_fmac_f32 v{70+w}, v{20+d}, v{40+d}")
    round_bf16(70+w, 70+w)
    e(f"v_mul_f32 v{70+w}, 0x3e64f92e, v{70+w}")
    round_bf16(70+w, 70+w)
    e(f"v_cmp_le_u32 vcc, {2*w}, v1\nv_mov_b32 v6, 0xce6e6b28\ns_nop 1\nv_cndmask_b32 v{70+w}, v6, v{70+w}, vcc")
e("v_mov_b32 v80, v70")
for w in range(1,8): e(f"v_max_f32 v80, v80, v{70+w}")
e("v_mov_b32 v81, 0")
for w in range(8):
    e(f"v_sub_f32 v{70+w}, v{70+w}, v80\nv_mul_f32 v{70+w}, 0x3fb8aa3b, v{70+w}\nv_exp_f32 v{70+w}, v{70+w}\ns_nop 0\nv_add_f32 v81, v81, v{70+w}")
e("v_rcp_f32 v81, v81\ns_nop 0")
for w in range(8):
    e(f"v_mul_f32 v{70+w}, v{70+w}, v81"); round_bf16(70+w, 70+w)
for d in range(20): e(f"v_mov_b32 v{20+d}, 0")
for w in range(8):
    e(f"v_subrev_u32 v5, {2*w}, v1\nv_max_i32 v5, 0, v5\nv_mul_lo_u32 v5, v5, s16\nv_add_u32 v5, v5, v4")
    load20(10, 5, 2560); e("s_waitcnt vmcnt(0)"); unpack20(40, 10)
    for d in range(20): e(f"v_fmac_f32 v{20+d}, v{70+w}, v{40+d}")
for i in range(10): e(f"v_cvt_pk_bf16_f32 v{10+i}, v{20+2*i}, v{21+2*i}")
e("s_movk_i32 s17, 1280\nv_mul_lo_u32 v3, v1, s17\nv_add_u32 v3, v3, v4")
for i in range(5): e(f"buffer_store_dwordx2 v[{10+2*i}:{11+2*i}], v3, s[12:15], 0 offen offset:{8*i}")
e("at_done:\ns_endpgm")

kstart("g2_kernel")
e("s_cmp_ge_u32 s2, 1280\ns_cbranch_scc1 g2_done")
e("s_load_dwordx2 s[4:5], s[0:1], 16\ns_load_dwordx2 s[6:7], s[0:1], 40\ns_load_dwordx2 s[8:9], s[0:1], 64\ns_load_dwordx2 s[10:11], s[0:1], 0\ns_load_dwordx2 s[30:31], s[0:1], 48\ns_waitcnt lgkmcnt(0)")
e("s_mov_b32 s20, 0x33333334\ns_mul_hi_u32 s21, s2, s20\ns_mul_i32 s22, s21, 5\ns_sub_u32 s22, s2, s22")
e("s_lshl_b32 s26, s22, 8\nv_lshl_add_u32 v1, v0, 1, s26")
e(f"s_mul_i32 s23, s21, 10240\ns_add_u32 s23, s23, {O_OFF}\ns_add_u32 s24, s8, s23\ns_addc_u32 s25, s9, 0")
srd(12, 4, 640*640*2)
naive_gemm("g2a", 640, 1280, 1280, 24, 12, 1, 40)
e(f"s_mul_i32 s23, s21, 24576\ns_add_u32 s23, s23, {H_OFF}\ns_add_u32 s24, s8, s23\ns_addc_u32 s25, s9, 0")
srd(12, 6, 1536*640*2)
naive_gemm("g2b", 1536, 3072, 1280, 24, 12, 1, 60)
srd(16, 10, 2621440); srd(32, 30, 2621440)
e("s_mul_i32 s27, s21, 10240\nv_add_u32 v1, s27, v1")
for r in range(8):
    e(f"s_mov_b32 s28, {r*1280}\nbuffer_load_ushort v5, v1, s[16:19], s28 offen")
    round_bf16(2, 40+r)
    round_bf16(3, 60+r)
    silu(3, 3, 4); round_bf16(3, 3)
    e("v_mul_f32 v2, v2, v3"); round_bf16(2, 2)
    e("s_waitcnt vmcnt(0)\nv_lshlrev_b32 v5, 16, v5\nv_add_f32 v2, v2, v5")
    if PERT != 0.0:
        import struct
        bits = struct.unpack("<I", struct.pack("<f", 1.0+PERT))[0]
        e(f"v_mul_f32 v2, {bits:#x}, v2")
    e(f"v_cvt_pk_bf16_f32 v2, v2, v2\nbuffer_store_short v2, v1, s[32:35], s28 offen\ns_nop 1")
e("g2_done:\ns_endpgm")
kstart("nop_kernel"); e("s_endpgm")

e('.section .rodata,"a"')
names = ["ln_kernel","g1_kernel","at_kernel","g2_kernel"] + (["nop_kernel"] if EXTRA else [])
for n in names:
    e(f""".p2align 6
.amdhsa_kernel {n}
  .amdhsa_next_free_vgpr 128
  .amdhsa_next_free_sgpr 96
  .amdhsa_accum_offset 128
  .amdhsa_group_segment_fixed_size 0
  .amdhsa_kernarg_size 72
  .amdhsa_user_sgpr_count 2
  .amdhsa_user_sgpr_kernarg_segment_ptr 1
  .amdhsa_system_sgpr_workgroup_id_x 1
.end_amdhsa_kernel""")
txt = "\n".join(L) + "\n"
if not EXTRA:
    txt = txt.replace(".globl nop_kernel\n.p2align 8\n.type nop_kernel,@function\nnop_kernel:\ns_endpgm\n", "")
open(sys.argv[1], "w").write(txt)
```

```python
import re

class Asm:
    def __init__(self):
        self.lines = []
    def __call__(self, s, *a):
        for l in s.split("\n"):
            l = l.strip()
            if l: self.lines.append(l)
    def label(self, n): self.lines.append(n + ":")
    def comment(self, c): self.lines.append("; " + c)
    def text(self): return "\n".join(self.lines) + "\n"

_reg_re = re.compile(r"^(-|abs\(|neg\()?([vsa])(\d+|\[(\d+):(\d+)\])\)?$")
def parse_reg(op):
    op = op.strip()
    if op in ("vcc",): return ("s", {"vcc_lo", "vcc_hi"})
    if op in ("vcc_lo", "vcc_hi"): return ("s", {op})
    if op in ("exec",): return ("s", {"exec_lo", "exec_hi"})
    if op in ("exec_lo", "exec_hi"): return ("s", {op})
    if op == "m0": return ("s", {"m0"})
    m = _reg_re.match(op)
    if not m: return None
    k = m.group(2)
    if m.group(4) is not None:
        lo, hi = int(m.group(4)), int(m.group(5))
        return (k, set(range(lo, hi + 1)))
    return (k, {int(m.group(3))})

TRANS = ("v_exp_f32", "v_log_f32", "v_rcp_f32", "v_rsq_f32", "v_sqrt_f32", "v_sin_f32", "v_cos_f32")
class Ins:
    __slots__ = ("text", "mn", "kind", "vw", "vr", "sw", "sr", "passes", "srcc", "nop", "dpp", "lds_dma", "store_wide", "trans", "opsel")
    def __init__(self, text):
        self.text = text
        t = text.split(";")[0].split("//")[0].strip()
        parts = t.split(None, 1)
        mn = parts[0]; self.mn = mn
        rest = parts[1] if len(parts) > 1 else ""
        ops = [o.strip() for o in re.split(r",(?![^\[]*\])", rest)] if rest else []
        mods = ""
        if ops:
            sp = ops[-1].split(None, 1)
            if len(sp) > 1 and not sp[0].startswith("abs(") :
                ops[-1] = sp[0]; mods = sp[1]
        self.vw = set(); self.vr = set(); self.sw = set(); self.sr = set()
        self.passes = 0; self.srcc = set(); self.nop = 0; self.dpp = False; self.lds_dma = False
        self.store_wide = False; self.trans = False; self.opsel = False
        def rd(o):
            r = parse_reg(o)
            if r is None: return
            if r[0] == "v": self.vr |= r[1]
            elif r[0] == "a": self.vr |= {("a", i) for i in r[1]}
            else: self.sr |= r[1]
        def wr(o):
            r = parse_reg(o)
            if r is None: return
            if r[0] == "v": self.vw |= r[1]
            elif r[0] == "a": self.vw |= {("a", i) for i in r[1]}
            else: self.sw |= r[1]
        if mn == "s_nop":
            self.kind = "nop"; self.nop = int(ops[0], 0) + 1
        elif mn.startswith("v_mfma"):
            self.kind = "mfma"
            wr(ops[0]); rd(ops[1]); rd(ops[2]); rd(ops[3])
            r = parse_reg(ops[3])
            if r: self.srcc = set(r[1]) if r[0] == "v" else {("a", i) for i in r[1]}
            if "4x4x4" in mn: self.passes = 2
            elif "16x16x32" in mn or "16x16x16" in mn: self.passes = 4
            elif "32x32x16" in mn or "32x32x8" in mn: self.passes = 8
            else: raise Exception("unknown mfma " + mn)
        elif mn.startswith("v_"):
            self.kind = "valu"
            base = mn.replace("_e32", "").replace("_e64", "").replace("_dpp", "").replace("_sdwa", "")
            self.trans = base in TRANS
            if "row_" in t or "quad_perm" in t or "wave_" in t: self.dpp = True
            if "_sdwa" in mn and "dst_sel:DWORD" not in t: self.opsel = True
            if base.startswith("v_cmp"):
                wr(ops[0]); [rd(o) for o in ops[1:]]
                if base.startswith("v_cmpx"): self.sw |= {"exec_lo", "exec_hi"}
            elif base in ("v_readfirstlane_b32", "v_readlane_b32"):
                wr(ops[0]); [rd(o) for o in ops[1:]]
            elif base.startswith("v_permlane") and "swap" in base:
                wr(ops[0]); wr(ops[1]); rd(ops[0]); rd(ops[1])
            elif base in ("v_add_co_u32", "v_sub_co_u32", "v_addc_co_u32", "v_subb_co_u32"):
                wr(ops[0]); wr(ops[1]); [rd(o) for o in ops[2:]]
            else:
                wr(ops[0]); [rd(o) for o in ops[1:]]
                if base in ("v_fmac_f32", "v_dot2c_f32_bf16", "v_pk_fmac_f16", "v_writelane_b32"): rd(ops[0])
                if base == "v_cndmask_b32" and len(ops) == 3: self.sr |= {"vcc_lo", "vcc_hi"}
        elif mn.startswith("ds_"):
            self.kind = "ds"
            if mn.startswith("ds_read") or mn.startswith("ds_bpermute") or mn.startswith("ds_swizzle") or mn.startswith("ds_permute"):
                wr(ops[0]); [rd(o) for o in ops[1:]]
            else:
                [rd(o) for o in ops]
        elif mn.startswith("buffer_") or mn.startswith("global_"):
            self.kind = "vmem"
            lds = (" lds" in (" " + mods)) or mn.startswith("global_load_lds")
            if mn in ("buffer_inv", "buffer_wbl2"):
                pass
            elif lds:
                self.lds_dma = True
                [rd(o) for o in ops]; self.sr |= {"m0"}
            elif "load" in mn:
                wr(ops[0]); [rd(o) for o in ops[1:]]
            elif "store" in mn:
                [rd(o) for o in ops]
                if "x3" in mn or "x4" in mn: self.store_wide = True
            elif "atomic" in mn:
                [rd(o) for o in ops]
                if "sc0" in mods: wr(ops[0])
        elif mn.startswith("s_"):
            self.kind = "salu"
            if mn in ("s_waitcnt", "s_barrier", "s_endpgm", "s_branch", "s_setprio", "s_sleep") or mn.startswith("s_cbranch"):
                self.kind = "sctl"
            elif mn.startswith("s_cmp") or mn.startswith("s_bitcmp"):
                [rd(o) for o in ops]
            elif mn.startswith("s_load") or mn.startswith("s_memtime") or mn.startswith("s_memrealtime"):
                self.kind = "smem"; wr(ops[0]); [rd(o) for o in ops[1:]]
            else:
                if ops: wr(ops[0]); [rd(o) for o in ops[1:]]
                if "saveexec" in mn: self.sw |= {"exec_lo", "exec_hi"}
        else:
            raise Exception("unknown instruction: " + text)

def store_data_regs(ins):
    t = ins.text.split(";")[0].strip()
    ops = [o.strip() for o in re.split(r",(?![^\[]*\])", t.split(None, 1)[1])]
    if ins.mn.startswith("buffer_"): r = parse_reg(ops[0])
    else: r = parse_reg(ops[1])
    return r[1] if r else set()

def required_gap(p, c):
    need = 0
    if p.kind == "valu":
        if c.kind == "mfma" and (p.vw & c.vr): need = max(need, 2)
        if c.kind == "valu" and c.dpp and (p.vw & c.vr): need = max(need, 2)
        if c.kind == "valu" and c.mn.startswith("v_permlane") and (p.vw & c.vr): need = max(need, 2)
        if c.kind == "valu" and (c.mn.startswith("v_readfirstlane") or c.mn.startswith("v_readlane")) and (p.vw & c.vr): need = max(need, 1)
        if p.trans and c.kind in ("valu",) and not c.trans and (p.vw & c.vr): need = max(need, 1)
        if p.trans and c.kind in ("valu",) and c.trans and (p.vw & c.vr): need = max(need, 1)
        if p.opsel and c.kind == "valu" and (p.vw & (c.vr | c.vw)): need = max(need, 1)
        if p.sw:
            if c.kind == "valu" and (p.sw & c.sr): need = max(need, 2)
            if c.kind == "valu" and (c.mn.startswith("v_readlane") or c.mn.startswith("v_writelane")) and (p.sw & c.sr): need = max(need, 4)
            if c.kind == "vmem" and (p.sw & c.sr): need = max(need, 5)
            if c.kind in ("salu","sctl","smem") and (p.sw & c.sr): need = max(need, 4)
            if ("exec_lo" in p.sw or "exec_hi" in p.sw):
                if c.kind == "mfma": need = max(need, 4)
                if c.kind == "valu" and c.dpp: need = max(need, 5)
                if c.kind == "valu" and (c.mn.startswith("v_readlane") or c.mn.startswith("v_readfirstlane") or c.mn.startswith("v_permlane")): need = max(need, 4)
    if p.kind == "salu":
        if "m0" in p.sw and c.kind == "vmem" and c.lds_dma: need = max(need, 1)
        if ("exec_lo" in p.sw or "exec_hi" in p.sw) and c.kind == "mfma": need = max(need, 2)
    if p.kind == "mfma":
        n = p.passes
        tab_rw = {2: 5, 4: 8, 8: 12, 16: 20}[n]
        if c.kind == "mfma":
            if p.vw & c.srcc:
                if c.srcc == p.vw and c.passes == p.passes: need = max(need, 2 if n == 2 else 0)
                else: need = max(need, {2: 4, 4: 6, 8: 10, 16: 18}[n])
            ab = c.vr - c.srcc if not (c.srcc & (c.vr - c.srcc)) else c.vr
            t = c.text.split(";")[0]
            ops = [o.strip() for o in re.split(r",(?![^\[]*\])", t.split(None, 1)[1])]
            abr = set()
            for o in ops[1:3]:
                r = parse_reg(o)
                if r: abr |= set(r[1]) if r[0] == "v" else {("a", i) for i in r[1]}
            if p.vw & abr: need = max(need, tab_rw)
            if (p.vw & c.vw) and not (p.vw & c.srcc): need = max(need, tab_rw)
        elif c.kind in ("valu", "ds", "vmem"):
            if p.vw & (c.vr | c.vw): need = max(need, tab_rw)
        if c.kind == "valu" and (p.srcc & c.vw): need = max(need, {2: 1, 4: 3, 8: 7, 16: 15}[n])
    if p.kind == "vmem" and p.store_wide:
        d = store_data_regs(p)
        if c.kind == "valu" and (d & c.vw): need = max(need, 2)
        elif c.kind in ("ds", "vmem", "mfma") and (d & c.vw): need = max(need, 1)
    return need

WINDOW = 22
def fix_hazards(lines):
    out = list(lines)
    changed = True
    it = 0
    while changed:
        changed = False; it += 1
        parsed = []
        labels = {}
        for i, l in enumerate(out):
            if l.endswith(":") and not l.startswith(";"):
                labels[l[:-1]] = i; parsed.append(None)
            elif l.startswith(";") or l.startswith("."):
                parsed.append(None)
            else:
                parsed.append(Ins(l))
        def states(ins): return ins.nop if ins.kind == "nop" else 1
        branch_src = {}
        for i, p in enumerate(parsed):
            if p is not None and (p.mn.startswith("s_cbranch") or p.mn == "s_branch"):
                tgt = p.text.split()[1]
                branch_src.setdefault(tgt, []).append(i)
        ins_at = None
        for j, c in enumerate(parsed):
            if c is None or c.kind in ("nop",): continue
            deficit = 0
            stack = [(j - 1, 0)]
            seen = set()
            while stack:
                i, dist = stack.pop()
                while i >= 0 and dist < WINDOW:
                    l = out[i]
                    p = parsed[i]
                    if p is None:
                        if l.endswith(":") and not l.startswith(";"):
                            for b in branch_src.get(l[:-1], []):
                                if (b, dist) not in seen:
                                    seen.add((b, dist)); stack.append((b, dist))
                        i -= 1; continue
                    if p.mn in ("s_endpgm",) or (p.mn == "s_branch" and i != j - 1 and False):
                        break
                    if p.mn == "s_branch" and dist > 0 and (i, -1) not in seen:
                        pass
                    need = required_gap(p, c)
                    if need > dist: deficit = max(deficit, need - dist)
                    dist += states(p)
                    i -= 1
                    if i >= 0 and parsed[i] is not None and parsed[i].mn in ("s_branch", "s_endpgm"):
                        break
            if deficit > 0:
                ins_at = (j, deficit); break
        if ins_at:
            j, d = ins_at
            while d > 0:
                k = min(d, 16)
                out.insert(j, f"s_nop {k-1}"); d -= k
            changed = True
        if it > 5000: raise Exception("hazard loop")
    return out

def auto_lgkm(lines):
    out = []
    q = []
    for l in lines:
        if l.startswith(";") or l.endswith(":"):
            out.append(l); continue
        ins = Ins(l)
        if ins.mn == "s_waitcnt":
            m = re.search(r"lgkmcnt\((\d+)\)", l)
            if m:
                n = int(m.group(1))
                while len(q) > n: q.pop(0)
            out.append(l); continue
        if ins.kind == "smem":
            raise Exception("smem inside auto_lgkm region: " + l)
        touched = ins.vr | ins.vw
        need = -1
        for i, d in enumerate(q):
            if d & touched: need = i
        if need >= 0:
            allowed = len(q) - 1 - need
            out.append(f"s_waitcnt lgkmcnt({min(allowed, 15)})")
            del q[:need+1]
        out.append(l)
        if ins.kind == "ds":
            q.append(set(ins.vw))
    return out, q
```

```python
from gen import *
import gen
from asmlib import auto_lgkm, Asm
P1_LDS = 163840
ONES = 0x3F803F80
EPS = 1e-5
NST = 10

def sched(M, R=(), V=(), D=(), lead=1, rspan=0.6, X=(), tail=2):
    if gen.OPTS.get("nostats"): V = []
    if gen.OPTS.get("nodma"): D = []
    if gen.OPTS.get("noreads"): R = []
    n = len(M)
    R = list(R); V = list(V); X = list(X); D = list(D)
    pre = []
    if lead == 0 and R: pre = [R.pop(0)]
    seq = [("r", r) for r in R]
    for t, d in enumerate(D):
        pos = min(len(seq), 1 + (t*(len(R)+len(D)))//len(D) + t*0)
        seq.insert(min(pos, len(seq)), ("d", d))
    nd = len(seq); slotsD = max(1, n - tail)
    x = max(0, nd - slotsD)
    dplan = [0]*n; left = nd
    for i in range(n):
        k = 2 if i < x else 1
        k = min(k, left); dplan[i] = k; left -= k
    assert left == 0, (n, nd)
    nv = len(V)
    cap = [0 if dplan[i] == 2 else 2 for i in range(n)]
    tot = sum(cap); i = n-1
    while tot < nv:
        cap[i] += 1; tot += 1; i -= 1
        if i < 0: i = n-1
    spare = tot - nv
    gaps = [[] for _ in range(n)]; pres = [[] for _ in range(n+1)]
    si = 0
    for i in range(n):
        for _ in range(dplan[i]):
            kind, it = seq[si]; si += 1
            if kind == "r": gaps[i].append(it)
            else:
                pres[i].append(it[0])
                gaps[i].append(it[1])
    vi = 0
    for i in range(n):
        rem_cap = sum(cap[i:]); rem_v = nv - vi
        k = min(cap[i], rem_v) if rem_cap <= rem_v else min(cap[i], rem_v, -(-rem_v*cap[i]//max(rem_cap, 1)))
        gaps[i] += V[vi:vi+k]; vi += k
    assert vi == nv, (vi, nv)
    for t, xx in enumerate(X):
        pos = (t*n)//max(len(X), 1)
        gaps[pos].append(xx)
    out = list(pre)
    for i in range(n):
        out += pres[i]; out.append(M[i]); out += gaps[i]
    return out

SMASK = 87
def stats_valu(S, vsum, vsq, t0, nd=4):
    V = []
    for d in range(nd):
        lo, hi = t0 + (d & 1)*2, t0 + (d & 1)*2 + 1
        V += [f"v_lshlrev_b32 v{lo}, 16, v{S+d}", f"v_and_b32 v{hi}, s{SMASK}, v{S+d}",
              f"v_add_f32 v{vsum}, v{vsum}, v{lo}", f"v_fmac_f32 v{vsq}, v{lo}, v{lo}",
              f"v_add_f32 v{vsum}, v{vsum}, v{hi}", f"v_fmac_f32 v{vsq}, v{hi}, v{hi}"]
    return V
def sq_valu(S, vsq, t0):
    V = []
    for d in range(4):
        lo, hi = t0 + (d & 1)*2, t0 + (d & 1)*2 + 1
        V += [f"v_lshlrev_b32 v{lo}, 16, v{S+d}", f"v_and_b32 v{hi}, s{SMASK}, v{S+d}", f"v_fmac_f32 v{vsq}, v{lo}, v{lo}", f"v_fmac_f32 v{vsq}, v{hi}, v{hi}"]
    return V
def reduce_g_list(v, t):
    return [f"v_mov_b32 v{t}, v{v}", "s_nop 1", f"v_permlane32_swap_b32 v{t}, v{v}", "s_nop 1", f"v_add_f32 v{v}, v{v}, v{t}",
            f"v_mov_b32 v{t}, v{v}", "s_nop 1", f"v_permlane16_swap_b32 v{t}, v{v}", "s_nop 1", f"v_add_f32 v{v}, v{v}, v{t}"]
def rbf_list(d, s):
    return [f"v_cvt_pk_bf16_f32 v{d}, v{s}, v{s}", f"v_and_b32 v{d}, s{SMASK}, v{d}"]
def finish_stats_list(vsum, vsq, t):
    L = [f"v_mul_f32 v{vsum}, {f2u(1/640):#x}, v{vsum}", f"v_mul_f32 v{vsq}, {f2u(1/640):#x}, v{vsq}",
         f"v_fma_f32 v{vsq}, -v{vsum}, v{vsum}, v{vsq}", f"v_max_f32 v{vsq}, 0, v{vsq}"]
    L += rbf_list(vsum, vsum) + rbf_list(vsq, vsq)
    L += [f"v_add_f32 v{vsq}, {f2u(EPS):#x}, v{vsq}"] + rbf_list(vsq, vsq)
    L += [f"v_sqrt_f32 v{vsq}, v{vsq}", "s_nop 0"] + rbf_list(vsq, vsq)
    L += [f"v_rcp_f32 v{t}, v{vsq}", "s_nop 0", f"v_mul_f32 v{vsq}, v{vsum}, v{t}", f"v_mov_b32 v{vsum}, v{t}"]
    return L
def zip2(A, B):
    out = []
    for x, y in zip(A, B):
        if x.startswith("s_nop") and y.startswith("s_nop"): continue
        out += [x, y]
    return out
def emit(a, L):
    for x in L: a(x)
def kmap(a, dst, rho, t):
    a(f"v_and_b32 v{dst}, 0xfffffff3, v{rho}\nv_and_b32 v{t}, 4, v{rho}\nv_lshl_or_b32 v{dst}, v{t}, 1, v{dst}\nv_bfe_u32 v{t}, v{rho}, 3, 1\nv_lshl_or_b32 v{dst}, v{t}, 2, v{dst}")

def adv(stg):
    NLK = gen.OPTS.get("nlk", 2)
    if stg + 1 < NLK: return f"s_mov_b32 s55, {stg+1}"
    if stg + 1 == NLK: return "s_mov_b32 s55, s54"
    return f"s_add_u32 s55, s55, 1\ns_cmp_eq_u32 s55, 10\ns_cselect_b32 s55, {NLK}, s55"

def nib(vals):
    assert len(vals) == 8 and all(0 <= v < 16 for v in vals)
    return sum(v << (4*i) for i, v in enumerate(vals))
def bfe(dst, vals): return f"s_bfe_u32 s{dst}, {nib(vals):#x}, s19"

def gen_p1(a, name="p1_kernel", dbg=False):
    OPTS = gen.OPTS
    a(f".globl {name}\n.p2align 8\n.type {name},@function\n{name}:")
    a("s_cmp_ge_u32 s2, 256\ns_cbranch_scc1 p1_done")
    a("s_load_dwordx4 s[4:7], s[0:1], 0")
    a("s_load_dwordx2 s[8:9], s[0:1], 64")
    a("s_load_dwordx4 s[56:59], s[0:1], 32")
    a("s_load_dwordx2 s[60:61], s[0:1], 16")
    if dbg: a("s_load_dwordx2 s[84:85], s[0:1], 56")
    if dbg or OPTS.get("stamps"): a("s_memtime s[62:63]")
    a("s_and_b32 s10, s2, 7\ns_lshr_b32 s11, s2, 3")
    a("v_lshrrev_b32 v1, 6, v0\nv_and_b32 v0, 63, v0")
    a("s_and_b32 s12, s10, 1\ns_lshl_b32 s12, s12, 3\ns_and_b32 s13, s11, 7\ns_add_u32 s12, s12, s13")
    a("v_readfirstlane_b32 s14, v1")
    a("s_lshr_b32 s13, s10, 1\ns_lshr_b32 s15, s11, 3\ns_lshl_b32 s15, s15, 2\ns_add_u32 s13, s13, s15")
    a("v_and_b32 v1, 15, v0\nv_lshrrev_b32 v2, 4, v0")
    a("v_lshrrev_b32 v3, 3, v0\nv_and_b32 v4, 7, v0\nv_xor_b32 v4, v4, v3\nv_lshlrev_b32 v4, 4, v4")
    a(f"s_mov_b32 s{SMASK}, 0xffff0000")
    a("s_and_b32 s15, s14, 3\ns_lshr_b32 s16, s14, 2\ns_lshl_b32 s19, s14, 2\ns_add_u32 s19, s19, 0x40000")
    a("s_lshl_b32 s17, s12, 7\ns_lshl_b32 s18, s15, 5\ns_add_u32 s17, s17, s18\ns_add_u32 s17, s17, s16")
    a("v_lshlrev_b32 v5, 1, v3\nv_add_u32 v5, s17, v5\nv_mul_u32_u24 v10, 1280, v5\nv_add_u32 v10, v10, v4")
    a("v_add_u32 v11, 20480, v10")
    a("s_lshl_b32 s34, s14, 11\ns_add_u32 s35, s34, 1024")
    a("v_and_b32 v6, 7, v1\nv_xor_b32 v6, v6, v2\nv_lshlrev_b32 v6, 4, v6\nv_lshl_add_u32 v6, v1, 7, v6")
    a("v_xor_b32 v7, 64, v6")
    a("v_bfe_u32 v8, v0, 2, 2\nv_and_b32 v9, 3, v0")
    a("v_lshrrev_b32 v30, 1, v2\nv_lshlrev_b32 v30, 4, v30\nv_and_b32 v31, 1, v2\nv_lshl_add_u32 v30, v31, 2, v30\nv_add_u32 v30, v30, v8")
    NLK = OPTS.get("nlk", 2); NR = 10 - NLK
    if OPTS.get("rot", 1) == 0: a(f"s_mov_b32 s54, {NLK}")
    else:
        a(f"s_lshr_b32 s28, s11, 3\ns_mul_i32 s28, s28, {OPTS.get('rotk', 2)}\ns_add_u32 s28, s28, s12\ns_and_b32 s28, s28, 7")
        if NR < 8: a(f"s_cmp_ge_u32 s28, {NR}\ns_cselect_b32 s29, {NR}, 0\ns_sub_u32 s28, s28, s29")
        a(f"s_add_u32 s54, s28, {NLK}")
    a("s_mov_b32 s55, 0")
    a("s_cmp_ge_u32 s13, 8\ns_cbranch_scc1 p1_ffn")
    gen_qkv(a)
    a("s_branch p1_end")
    a.label("p1_ffn")
    gen_ffn(a)
    a.label("p1_end")
    gen.stamp(a); gen.stamp_dump(a, 14)
    if dbg:
        a("s_memtime s[64:65]\ns_waitcnt vmcnt(0) lgkmcnt(0)\ns_sub_u32 s64, s64, s62")
        a("s_mov_b32 s68, s84\ns_and_b32 s69, s85, 0xffff\ns_mov_b32 s70, 256\ns_mov_b32 s71, 0x20000")
        a("s_cmp_lt_u32 s2, 64\ns_cbranch_scc0 p1_done\ns_cmp_eq_u32 s14, 0\ns_cbranch_scc0 p1_done")
        a("v_mov_b32 v2, s64\ns_lshl_b32 s3, s2, 2\nv_mov_b32 v3, s3\nv_cmp_eq_u32 vcc, 0, v0\ns_and_saveexec_b64 s[66:67], vcc\nbuffer_store_dword v2, v3, s[68:71], 0 offen")
    a.label("p1_done")
    a("s_endpgm")

def common_srds(a):
    a("s_waitcnt lgkmcnt(0)")
    srd(a, 20, 4, 2621440)
    if gen.OPTS.get("stamps"): gen.stamp_init(a, 8); gen.rstamp(a, 62)
    gen.stamp(a)

def touch0_x(a, tag):
    a(f"s_sub_u32 s28, s14, 3\ns_cmp_lt_u32 s28, 2\ns_cbranch_scc0 {tag}_n0x")
    a("v_lshrrev_b32 v228, 1, v0\nv_and_b32 v229, 1, v0\nv_and_b32 v230, 31, v0\ns_cmp_eq_u32 s28, 0\ns_cselect_b64 vcc, -1, 0")
    a("v_cndmask_b32 v228, v230, v228, vcc\nv_mov_b32 v230, 2\nv_cndmask_b32 v229, v230, v229, vcc")
    a("s_lshr_b32 s28, s11, 3\ns_lshl_b32 s28, s28, 5\ns_lshl_b32 s29, s12, 7\ns_add_u32 s28, s28, s29\nv_add_u32 v228, s28, v228\nv_mul_u32_u24 v228, 1280, v228\nv_lshl_add_u32 v228, v229, 7, v228")
    a("buffer_load_dword v229, v228, s[20:23], 0 offen")
    a.label(f"{tag}_n0x")

def touch_x(a, tag):
    if not gen.OPTS.get("touch"): return
    a(f"s_cmp_lt_u32 s14, 4\ns_cbranch_scc0 {tag}_ntx")
    a("s_lshr_b32 s28, s11, 3\ns_lshl_b32 s28, s28, 5\ns_lshl_b32 s29, s14, 3\ns_add_u32 s28, s28, s29\ns_lshl_b32 s29, s12, 7\ns_add_u32 s28, s28, s29")
    a("v_add_u32 v228, s28, v3\nv_mul_u32_u24 v228, 1280, v228\nv_and_b32 v229, 7, v0\nv_lshl_add_u32 v228, v229, 7, v228")
    a("buffer_load_dword v229, v228, s[20:23], 0 offen offset:256")
    a.label(f"{tag}_ntx")

def distribute(items, nhalves, first, weights=None):
    out = [[] for _ in range(nhalves)]
    k = len(items); span = nhalves - first
    for t, x in enumerate(items): out[first + (t*span)//max(k, 1)].append(x)
    return out

def gen_qkv(a):
    QX = 18432; QW0 = 3*QX; QP = 30720; QWS = 10240
    def dma_list(stg):
        sl = stg % 3
        d5 = {0: "s39", 1: "s52", 2: "s53"}[sl]
        return [(f"s_add_u32 m0, s34, {sl*QX}", "buffer_load_dwordx4 v10, s[20:23], s48 offen " + gen.OPTS.get("xf","") + " lds"),
                (f"s_add_u32 m0, s35, {sl*QX}", "buffer_load_dwordx4 v11, s[20:23], s48 offen " + gen.OPTS.get("xf","") + " lds"),
                (f"s_add_u32 m0, s36, {sl*QWS}", "buffer_load_dwordx4 v12, s[24:27], s49 offen " + gen.OPTS.get("wf","") + " lds"),
                (f"s_add_u32 m0, s37, {sl*QWS}", "buffer_load_dwordx4 v13, s[24:27], s49 offen " + gen.OPTS.get("wf","") + " lds"),
                (f"s_add_u32 m0, s38, {sl*QWS}", "buffer_load_dwordx4 v14, s[24:27], s49 offen " + gen.OPTS.get("wf","") + " lds"),
                (f"s_mov_b32 m0, {d5}", "s_mov_b64 exec, s[46:47]\nbuffer_load_dwordx4 v15, s[40:43], s45 offen " + gen.OPTS.get("wf","") + " lds\ns_mov_b64 exec, -1\n" +
                 adv(stg) + f"\ns_lshl_b32 s48, s55, 7\ns_mul_i32 s49, s55, {64*3840}\ns_mul_i32 s45, s55, s44")]
    def one_dma(d): a(d[0]); a("s_nop 0"); a(d[1])
    def wvoff(i):
        qs = [min(w + 8*(i-2), 29) for w in range(8)]
        a(bfe(29, [q//10 for q in qs])); a(bfe(30, [q % 10 for q in qs]))
        a("s_lshl_b32 s31, s30, 6\nv_add_u32 v32, s31, v0")
        a("v_mul_u32_u24 v33, 6554, v32\nv_lshrrev_b32 v33, 16, v33\nv_mul_u32_u24 v34, 10, v33\nv_sub_u32 v34, v32, v34")
        kmap(a, 35, 33, 32)
        a("v_mul_u32_u24 v35, 3840, v35\nv_lshl_add_u32 v35, v34, 4, v35")
        a(f"s_mul_i32 s31, s29, 1280\ns_add_u32 s31, s31, s18\nv_add_u32 v{10+i}, s31, v35")
        a(f"s_mul_i32 s31, s29, {QP}\ns_lshl_b32 s33, s30, 10\ns_add_u32 s31, s31, s33\ns_add_u32 s{34+i}, s31, {QW0}")
    a("s_mul_i32 s18, s13, 160")
    wvoff(2)
    common_srds(a)
    a(f"s_lshl_b32 s48, s55, 7\ns_mul_i32 s49, s55, {64*3840}")
    D0 = dma_list(0); D1 = dma_list(1)
    srd(a, 24, 6, 640*1920*2)
    if gen.OPTS.get("touch0", 1):
        touch0_x(a, "q")
        a("s_cmp_lt_u32 s14, 3\ns_cbranch_scc0 q_n0w")
        a("s_and_b32 s29, s12, 7\ns_mul_i32 s29, s29, 24\nv_lshrrev_b32 v228, 1, v0\nv_add_u32 v228, s29, v228\nv_mul_u32_u24 v228, 3840, v228\nv_and_b32 v229, 1, v0\nv_lshl_add_u32 v228, v229, 7, v228")
        a("s_mul_i32 s28, s14, 1280\ns_and_b32 s29, s18, 0xffffff80\ns_add_u32 s28, s28, s29")
        a("buffer_load_dword v229, v228, s[24:27], s28 offen")
        a.label("q_n0w")
    one_dma(D0[0]); one_dma(D0[1])
    one_dma(D0[2])
    wvoff(3); one_dma(D0[3])
    wvoff(4); one_dma(D0[4])
    wvoff(5)
    a("s_sub_u32 s28, s14, 6\ns_lshl_b32 s29, s12, 7\ns_sub_u32 s29, s29, 16\ns_add_u32 s29, s29, s28")
    a("v_lshlrev_b32 v32, 1, v3\nv_add_u32 v32, s29, v32\nv_max_i32 v32, 0, v32\nv_mul_u32_u24 v32, 1280, v32\nv_add_u32 v32, v32, v4")
    a("s_lshl_b32 s29, s28, 10\ns_add_u32 s29, s29, 16384")
    a(f"s_cmp_ge_u32 s14, 6\ns_cselect_b32 s39, s29, s39\ns_cselect_b64 vcc, -1, 0\ns_mov_b32 s33, {QWS}\ns_cselect_b32 s33, {QX}, s33")
    a("v_cndmask_b32 v15, v15, v32, vcc")
    a("s_add_u32 s52, s39, s33\ns_add_u32 s53, s52, s33")
    a(f"s_cmp_ge_u32 s14, 6\ns_cselect_b32 s40, s20, s24\ns_cselect_b32 s41, s21, s25\ns_cselect_b32 s42, s22, s26\ns_mov_b32 s43, 0x20000\ns_mov_b32 s44, {64*3840}\ns_cselect_b32 s44, 128, s44")
    a("s_cmp_eq_u32 s14, 6\ns_cselect_b32 s46, 0xffffff00, -1\ns_mov_b32 s47, -1\ns_mul_i32 s45, s55, s44")
    one_dma(D0[5])
    VX0, VX1, VH0, VH1, VS0, VS1, VW = 16, 17, 18, 19, 20, 21, 22
    PRE = []
    PRE.append(f"s_lshl_b32 s28, s16, 13\nv_add_u32 v{VX0}, s28, v6\nv_add_u32 v{VX1}, s28, v7\nv_add_u32 v{VH0}, 16384, v6\nv_add_u32 v{VH1}, 16384, v7")
    PRE.append(f"s_lshl_b32 s29, s15, 11\nv_add_u32 v{VS0}, s29, v{VX0}\nv_add_u32 v{VS1}, s29, v{VX1}")
    PRE.append("v_mul_u32_u24 v32, 160, v30\nv_mul_u32_u24 v33, 40, v9\nv_add_u32 v32, v32, v33")
    STAT = 147456; CS = STAT + 1280
    KB = 23040; VB = 2*KB; DUM = 3*KB
    E = dict(VD=188, VDH=192, VK=194, VV=197, VQ=200, BI=201, STR=213, STH=214, CSR=215, STW=219, CSW=220, L16=222)
    t0, t1, t2, t3 = 224, 225, 226, 227
    def feat(w, p):
        aa, b = w >> 2, w & 3
        return 4*b + ((p + 2*aa) & 3) if b < 3 else 12 + ((p + 2*aa) % 3)
    SU = [f"v_lshlrev_b32 v{t0}, 3, v0", f"v_lshlrev_b32 v{t1}, 4, v2", f"v_lshlrev_b32 v{E['L16']}, 4, v0", f"s_mul_i32 s17, s16, {4*2560}"]
    for p in range(4):
        fs = [min(feat(w, p), 14) for w in range(8)]
        PRE.append(bfe(64+p, fs) + "\n" + bfe(72+p, [f//5 for f in fs]) + "\n" + bfe(76+p, [f % 5 for f in fs]) + "\n" +
                   f"s_mul_i32 s31, s{72+p}, {QP}\ns_lshl_b32 s33, s{76+p}, 3\ns_add_u32 s31, s31, s33\ns_add_u32 s31, s31, {QW0}\nv_add_u32 v{VW+p}, s31, v32")
        it = f"s_mul_i32 s31, s{72+p}, {KB}\ns_lshl_b32 s33, s{76+p}, 9\ns_add_u32 s31, s31, s33\ns_add_u32 s33, s31, s17\nv_add_u32 v{E['VD']+p}, s33, v{t0}"
        if p < 2: it += f"\ns_add_u32 s33, s31, {8*2560}\ns_cmp_lt_u32 s{64+p}, 5\ns_cselect_b32 s33, {DUM}, s33\nv_add_u32 v{E['VDH']+p}, s33, v{t0}"
        it += f"\ns_lshl_b32 s33, s{64+p}, 6\ns_add_u32 s33, s33, {CS}\nv_add_u32 v{E['CSR']+p}, s33, v{t1}"
        if p < 2: it += f"\nv_mov_b32 v{E['CSW']+p}, v{E['CSR']+p}"
        SU.append(it)
    SU.append(f"v_lshlrev_b32 v{t2}, 3, v1\ns_lshl_b32 s28, s14, 7\ns_add_u32 s28, s28, {STAT}\nv_add_u32 v{E['STW']}, s28, v{t2}\n"
              f"s_lshl_b32 s28, s16, 9\ns_add_u32 s28, s28, {STAT}\nv_add_u32 v{E['STR']}, s28, v{t2}\nv_add_u32 v{E['STH']}, {STAT+8*128}, v{t2}")
    SU.append(f"s_mul_i32 s68, s14, 2560\ns_lshl_b32 s30, s16, 6\ns_add_u32 s30, s30, {8*2560+8*8}\ns_sub_u32 s30, s30, s68\n"
              f"s_cmp_eq_u32 s15, 0\ns_cselect_b32 s69, s30, {(-2560+128) & 0xffffffff:#x}")
    SU.append(f"v_add_u32 v{E['VQ']}, s68, v{t0}\nv_mov_b32 v{t2}, s69")
    SU.append(f"v_add_u32 v{E['VK']+2}, {KB}, v{E['VQ']}")
    SU.append(f"v_cmp_gt_u32 s[28:29], 4, v1\nv_cmp_gt_u32 s[30:31], 8, v1\nv_add_u32 v{E['VK']+1}, {-32 & 0xffffffff:#x}, v{E['VK']+2}\nv_add_u32 v{E['VK']}, {-64 & 0xffffffff:#x}, v{E['VK']+2}\n"
              f"v_cndmask_b32 v{t3}, 0, v{t2}, s[28:29]\nv_add_u32 v{E['VK']+1}, v{E['VK']+1}, v{t3}\nv_cndmask_b32 v{t3}, 0, v{t2}, s[30:31]\nv_add_u32 v{E['VK']}, v{E['VK']}, v{t3}")
    SU.append(f"v_lshl_add_u32 v{t3}, v9, 2, v8\nv_lshl_add_u32 v{t3}, v2, 4, v{t3}\nv_lshlrev_b32 v{t3}, 3, v{t3}\ns_add_u32 s28, s68, {VB}\nv_add_u32 v{E['VV']+2}, s28, v{t3}")
    SU.append(f"v_cmp_gt_u32 s[28:29], 1, v9\nv_cmp_gt_u32 s[30:31], 2, v9\nv_add_u32 v{E['VV']+1}, {-32 & 0xffffffff:#x}, v{E['VV']+2}\nv_add_u32 v{E['VV']}, {-64 & 0xffffffff:#x}, v{E['VV']+2}\n"
              f"v_cndmask_b32 v{t3}, 0, v{t2}, s[28:29]\nv_add_u32 v{E['VV']+1}, v{E['VV']+1}, v{t3}\nv_cndmask_b32 v{t3}, 0, v{t2}, s[30:31]\nv_add_u32 v{E['VV']}, v{E['VV']}, v{t3}")
    NEG = f2u(-1e30); BI = E['BI']
    SU.append(f"v_and_b32 v{t1}, 3, v1\nv_mov_b32 v{t3}, {NEG:#x}\n" +
              "\n".join(f"v_cmp_gt_u32 s[{28+2*i}:{29+2*i}], {i}, v{t1}" for i in range(1, 3)) + f"\nv_cmp_gt_u32 vcc, 3, v{t1}\n" +
              f"v_mov_b32 v{BI}, v{t3}\nv_mov_b32 v{BI+8}, 0\n" +
              f"v_cndmask_b32 v{BI+1}, v{t3}, 0, s[30:31]\nv_cndmask_b32 v{BI+9}, 0, v{t3}, s[30:31]\n" +
              f"v_cndmask_b32 v{BI+2}, v{t3}, 0, s[32:33]\nv_cndmask_b32 v{BI+10}, 0, v{t3}, s[32:33]\n" +
              f"v_cndmask_b32 v{BI+3}, v{t3}, 0, vcc\nv_cndmask_b32 v{BI+11}, 0, v{t3}, vcc\n" +
              "\n".join(f"v_mov_b32 v{BI+4+i}, 0" for i in range(4)))
    SU.append("s_or_b32 s28, s12, s15\ns_cmp_eq_u32 s28, 0\ns_cbranch_scc0 q_nostart\ns_mov_b32 exec_lo, 0x00ff00ff\ns_mov_b32 exec_hi, 0x00ff00ff\n" +
              "\n".join(f"v_mov_b32 v{BI+i}, v{t3}" for i in range(4)) + "\ns_mov_b32 exec_lo, 0x000f000f\ns_mov_b32 exec_hi, 0x000f000f\n" +
              "\n".join(f"v_mov_b32 v{BI+4+i}, v{t3}" for i in range(4)) + "\ns_mov_b64 exec, -1\nq_nostart:")
    SU.append("s_lshl_b32 s28, s12, 3\ns_add_u32 s28, s28, s14\ns_mul_i32 s28, s28, 69632\ns_lshr_b32 s29, s13, 1\ns_mul_i32 s29, s29, 5\ns_add_u32 s29, s29, 48\ns_lshl_b32 s29, s29, 10\ns_add_u32 s28, s28, s29\n"
              "s_and_b32 s29, s13, 1\ns_lshl_b32 s70, s29, 11\ns_add_u32 s70, s70, s28\ns_lshl_b32 s71, s29, 3\ns_add_u32 s71, s71, s28\ns_add_u32 s71, s71, 4096")
    SU.append(f"s_mov_b32 s80, s8\ns_and_b32 s81, s9, 0xffff\ns_mov_b32 s82, {A2_SIZE}\ns_mov_b32 s83, 0x20000")
    a("s_cmp_eq_u32 s14, 6\ns_cbranch_scc0 q_noones")
    a(f"v_mov_b32 v36, {ONES:#x}\nv_mov_b32 v37, v36\nv_mov_b32 v38, v36\nv_mov_b32 v39, v36\nv_lshlrev_b32 v40, 4, v0\ns_mov_b64 exec, 0xff")
    for s in range(3): a(f"ds_write_b128 v40, v[36:39] offset:{s*QX+16384}")
    a("s_mov_b64 exec, -1")
    a.label("q_noones")
    NSPR = 0
    allp = PRE + SU
    nl = [x.count("\n")+1 for x in allp]; tot = sum(nl); acc = 0; k = 0
    for x, n_ in zip(allp, nl):
        while k < 6 and acc >= (k*tot)//6: one_dma(D1[k]); k += 1
        a(x); acc += n_
    while k < 6: one_dma(D1[k]); k += 1
    touch_x(a, "q")
    if not not gen.OPTS.get("touch"):
        a("s_cmp_ge_u32 s14, 2\ns_cbranch_scc0 q_ntw")
        a("s_sub_u32 s28, s14, 2\ns_lshr_b32 s29, s28, 1\ns_mul_i32 s29, s29, 1280\ns_and_b32 s28, s28, 1\ns_lshl_b32 s28, s28, 7\ns_add_u32 s28, s28, s29\ns_and_b32 s29, s18, 0xffffff80\ns_add_u32 s28, s28, s29")
        a("s_and_b32 s29, s12, 7\ns_lshl_b32 s29, s29, 6\ns_add_u32 s29, s29, 128\nv_add_u32 v228, s29, v0\nv_mul_u32_u24 v228, 3840, v228")
        a("buffer_load_dword v229, v228, s[24:27], s28 offen")
        a.label("q_ntw")
    SUH = [[] for _ in range(2*NST)]
    rest = SU[len(SU)-NSPR:]
    for t_, x in enumerate(rest): SUH[1 + (t_*16)//max(len(rest), 1)].append(x)
    VSUM, VSQ, VT = 26, 27, 30
    ACC = 36; HACC = 100; GR = 232; SM = 236; OA = 240
    a(f"v_mov_b32 v{VSUM}, 0\nv_mov_b32 v{VSQ}, 0")
    SET = [108, 148]
    def path(tag, NP, isB):
        if isB:
            for e in range(4): a(f"v_mov_b32 v{OA+e}, {ONES:#x}")
        def read_list(st, stg, ks):
            B = SET[st]; R = []; sl = stg % 3
            vx, vh, vs = (VX0, VH0, VS0) if ks == 0 else (VX1, VH1, VS1)
            tr = lambda p: [f"ds_read_b64_tr_b16 v[{B+24+4*p+2*h}:{B+25+4*p+2*h}], v{VW+p} offset:{sl*QWS+(32*ks+8*h)*160}" for h in range(2)]
            R += tr(0); R.append(f"ds_read_b128 v[{B}:{B+3}], v{vx} offset:{sl*QX}")
            R += tr(1); R.append(f"ds_read_b128 v[{B+4}:{B+7}], v{vx} offset:{sl*QX+2048}")
            R += tr(2); R.append(f"ds_read_b128 v[{B+8}:{B+11}], v{vx} offset:{sl*QX+4096}")
            if NP == 4: R += tr(3)
            R.append(f"ds_read_b128 v[{B+12}:{B+15}], v{vx} offset:{sl*QX+6144}")
            R.append(f"ds_read_b128 v[{B+16}:{B+19}], v{vh} offset:{sl*QX}")
            R.append(f"ds_read_b128 v[{B+20}:{B+23}], v{vs} offset:{sl*QX}")
            return R
        def mfma_list(st, first):
            B = SET[st]; M = []
            c = lambda r: "0" if first else f"v[{r}:{r+3}]"
            for i in range(4):
                for p in range(NP):
                    r = ACC+16*i+4*p
                    M.append(f"v_mfma_f32_16x16x32_bf16 v[{r}:{r+3}], v[{B+24+4*p}:{B+27+4*p}], v[{B+4*i}:{B+4*i+3}], {c(r)}")
            for p in range(2):
                r = HACC+4*p
                M.append(f"v_mfma_f32_16x16x32_bf16 v[{r}:{r+3}], v[{B+24+4*p}:{B+27+4*p}], v[{B+16}:{B+19}], {c(r)}")
            if isB:
                M.insert(4, f"v_mfma_f32_16x16x32_bf16 v[{GR}:{GR+3}], v[{B+16}:{B+19}], v[{B+16}:{B+19}], {c(GR)}")
                M.insert(9, f"v_mfma_f32_16x16x32_bf16 v[{SM}:{SM+3}], v[{OA}:{OA+3}], v[{B+16}:{B+19}], {c(SM)}")
            return M
        def halo_chain():
            return [f"v_and_b32 v32, 3, v1", "v_cmp_eq_u32 vcc, 1, v32\nv_cmp_eq_u32 s[28:29], 2, v32\nv_cmp_eq_u32 s[30:31], 3, v32",
                    f"v_cndmask_b32 v29, v{GR}, v{GR+1}, vcc", f"v_cndmask_b32 v29, v29, v{GR+2}, s[28:29]", f"v_cndmask_b32 v29, v29, v{GR+3}, s[30:31]",
                    f"v_mov_b32 v28, v{SM}"] + finish_stats_list(28, 29, 34)
        a("s_waitcnt vmcnt(6) lgkmcnt(0)\ns_barrier")
        gen.stamp(a)
        L = Asm()
        emit(L, read_list(0, 0, 0))
        for s in range(NST):
            last = s == NST-1
            Da = (dma_list(2) if s == 0 else dma_list(s+2)[3:]) if s+2 < NST else []
            Db = dma_list(s+3)[:3] if s+3 < NST else []
            emit(L, sched(mfma_list(0, s == 0), R=read_list(1, s, 1), V=stats_valu(SET[0]+20, VSUM, VSQ, VT), D=Da, lead=0, X=SUH[2*s]))
            if not last: L(f"s_waitcnt vmcnt({6 if s < NST-2 else 0})\ns_barrier")
            if gen.OPTS.get("stamps") and not gen.OPTS.get("nostage"):
                L("s_waitcnt lgkmcnt(0)"); L("; STAMP")
            V = stats_valu(SET[1]+20, VSUM, VSQ, VT)
            M = mfma_list(1, False)
            if last:
                V = V + zip2(reduce_g_list(VSUM, VT), reduce_g_list(VSQ, VT+1)) + finish_stats_list(VSUM, VSQ, VT)
                if isB:
                    M = [m for m in M if f"v[{GR}:" in m.split(",")[0] or f"v[{SM}:" in m.split(",")[0]] + [m for m in M if not (f"v[{GR}:" in m.split(",")[0] or f"v[{SM}:" in m.split(",")[0])]
                    V = V + halo_chain()
            emit(L, sched(M, R=read_list(0, s+1, 0) if not last else [], V=V, D=Db, lead=1, X=SUH[2*s+1]))
        lines, q = auto_lgkm(L.lines)
        for l in lines:
            if l == "; STAMP": gen.stamp(a)
            else: a(l)
        gen.stamp(a)
        a(f"ds_write_b64 v{E['STW']}, v[{VSUM}:{VSQ}]")
        a("s_mov_b32 exec_lo, 0x00010001\ns_mov_b32 exec_hi, 0x00010001")
        for p in range(2): a(f"ds_write_b128 v{E['CSW']+p}, v[{HACC+4*p}:{HACC+4*p+3}]")
        a("s_mov_b64 exec, -1")
        if isB:
            a("s_mov_b32 exec_lo, 0x00f0000f\ns_mov_b32 exec_hi, 0xf0000f00")
            a(f"ds_write_b64 v{E['STH']}, v[28:29]")
            a("s_mov_b64 exec, -1")
        a("s_waitcnt lgkmcnt(0)\ns_barrier")
        gen.stamp(a)
        ST = 108; CSR = 120
        for i in range(4): a(f"ds_read_b64 v[{ST+2*i}:{ST+2*i+1}], v{E['STR']} offset:{128*i}")
        for p in range(NP): a(f"ds_read_b128 v[{CSR+4*p}:{CSR+4*p+3}], v{E['CSR']+p}")
        a(f"ds_read_b64 v[{ST+8}:{ST+9}], v{E['STH']}")
        a("s_waitcnt lgkmcnt(0)")
        tiles = [(ACC+16*i+4*p, ST+2*i, CSR+4*p, E['VD']+p, i*2560) for i in range(4) for p in range(NP)]
        tiles += [(HACC+4*p, ST+8, CSR+4*p, E['VDH']+p, 0) for p in range(2)]
        for n, (r, st, cs, vd, off) in enumerate(tiles):
            T0 = 140 + 8*(n & 1)
            for e in (0, 2): a(f"v_pk_mul_f32 v[{T0+e}:{T0+e+1}], v[{cs+e}:{cs+e+1}], v[{st}:{st+1}] op_sel:[0,1] op_sel_hi:[1,1]")
            for e in (0, 2): a(f"v_pk_fma_f32 v[{T0+e}:{T0+e+1}], v[{r+e}:{r+e+1}], v[{st}:{st+1}], v[{T0+e}:{T0+e+1}] op_sel_hi:[1,0,1] neg_lo:[0,0,1] neg_hi:[0,0,1]")
            a(f"v_cvt_pk_bf16_f32 v{T0+4}, v{T0}, v{T0+1}\nv_cvt_pk_bf16_f32 v{T0+5}, v{T0+2}, v{T0+3}")
            a(f"ds_write_b64 v{vd}, v[{T0+4}:{T0+5}] offset:{off}")
        a("s_waitcnt lgkmcnt(0)\ns_barrier")
    a("s_cmp_eq_u32 s15, 3\ns_cbranch_scc1 q_pathB")
    path("A", 4, False)
    a("s_branch q_attn")
    a.label("q_pathB")
    path("B", 3, True)
    a.label("q_attn")
    gen.stamp(a)
    QR = 36; KR = 46; VR = 76
    for t in range(5): a(f"ds_read_b64 v[{QR+2*t}:{QR+2*t+1}], v{E['VQ']} offset:{t*512}")
    for t in range(5):
        for kb in range(3): a(f"ds_read_b64 v[{KR+10*kb+2*t}:{KR+10*kb+2*t+1}], v{E['VK']+kb} offset:{t*512}")
    S = 128; O = 140
    c = f2u(LOG2E * 20**-0.5)
    a(f"s_mov_b32 s30, {c:#x}")
    for t in range(5):
        a(f"s_waitcnt lgkmcnt({min(15, 3*(4-t))})")
        for kb in range(3):
            cc = "0" if t == 0 else f"v[{S+4*kb}:{S+4*kb+3}]"
            a(f"v_mfma_f32_4x4x4_16b_bf16 v[{S+4*kb}:{S+4*kb+3}], v[{KR+10*kb+2*t}:{KR+10*kb+2*t+1}], v[{QR+2*t}:{QR+2*t+1}], {cc}")
    for kb in range(3):
        for t in range(5): a(f"ds_read_b64_tr_b16 v[{VR+10*kb+2*t}:{VR+10*kb+2*t+1}], v{E['VV']+kb} offset:{t*512}")
    for e in range(12): a(f"v_fma_f32 v{S+e}, v{S+e}, s30, v{E['BI']+e}")
    a(f"v_max3_f32 v34, v{S}, v{S+1}, v{S+2}\nv_max3_f32 v35, v{S+3}, v{S+4}, v{S+5}\nv_max3_f32 v34, v34, v{S+6}, v{S+7}\nv_max3_f32 v35, v35, v{S+8}, v{S+9}\nv_max3_f32 v34, v34, v{S+10}, v{S+11}\nv_max_f32 v34, v34, v35")
    for e in range(12): a(f"v_sub_f32 v{S+e}, v{S+e}, v34")
    for e in range(12): a(f"v_exp_f32 v{S+e}, v{S+e}")
    a(f"v_add_f32 v34, v{S}, v{S+1}\nv_add_f32 v35, v{S+2}, v{S+3}")
    for e in range(4, 12, 2): a(f"v_add_f32 v34, v34, v{S+e}\nv_add_f32 v35, v35, v{S+e+1}")
    a("v_add_f32 v34, v34, v35\nv_rcp_f32 v34, v34")
    for e in range(12): a(f"v_mul_f32 v{S+e}, v{S+e}, v34")
    P = 116
    for kb in range(3):
        a(f"v_cvt_pk_bf16_f32 v{P+2*kb}, v{S+4*kb}, v{S+4*kb+1}\nv_cvt_pk_bf16_f32 v{P+2*kb+1}, v{S+4*kb+2}, v{S+4*kb+3}")
    a("s_waitcnt lgkmcnt(0)")
    for kb in range(3):
        for t in range(5):
            cc = "0" if kb == 0 else f"v[{O+4*t}:{O+4*t+3}]"
            a(f"v_mfma_f32_4x4x4_16b_bf16 v[{O+4*t}:{O+4*t+3}], v[{VR+10*kb+2*t}:{VR+10*kb+2*t+1}], v[{P+2*kb}:{P+2*kb+1}], {cc}")
    for i in range(10): a(f"v_cvt_pk_bf16_f32 v{36+i}, v{O+2*i}, v{O+2*i+1}")
    fl = gen.OPTS.get("stf", "")
    a(f"buffer_store_dwordx4 v[36:39], v{E['L16']}, s[80:83], s70 offen {fl}")
    a(f"buffer_store_dwordx4 v[40:43], v{E['L16']}, s[80:83], s70 offen offset:1024 {fl}")
    a(f"buffer_store_dwordx2 v[44:45], v{E['L16']}, s[80:83], s71 offen {fl}")

def gen_ffn(a):
    FX = 16384; FW0 = 3*FX; FWS = 24576
    a("s_sub_u32 s13, s13, 8")
    def dma_list(stg):
        sl = stg % 3
        return [(f"s_add_u32 m0, s34, {sl*FX}", "buffer_load_dwordx4 v10, s[20:23], s48 offen " + gen.OPTS.get("xf","") + " lds"),
                (f"s_add_u32 m0, s35, {sl*FX}", "buffer_load_dwordx4 v11, s[20:23], s48 offen " + gen.OPTS.get("xf","") + " lds"),
                (f"s_add_u32 m0, s36, {sl*FWS}", "buffer_load_dwordx4 v12, s[24:27], s49 offen " + gen.OPTS.get("wf","") + " lds"),
                (f"s_add_u32 m0, s37, {sl*FWS}", "buffer_load_dwordx4 v13, s[24:27], s49 offen " + gen.OPTS.get("wf","") + " lds"),
                (f"s_add_u32 m0, s38, {sl*FWS}", "buffer_load_dwordx4 v14, s[24:27], s49 offen " + gen.OPTS.get("wf","") + " lds\n" + adv(stg) + f"\ns_lshl_b32 s48, s55, 7\ns_mul_i32 s49, s55, {64*3072}")]
    def one_dma(d): a(d[0]); a("s_nop 0"); a(d[1])
    def wvoff(i):
        a(f"s_add_u32 s28, s14, {8*i}\ns_lshl_b32 s31, s28, 6\nv_add_u32 v32, s31, v0")
        a("v_mul_u32_u24 v33, 2731, v32\nv_lshrrev_b32 v33, 16, v33\nv_mul_u32_u24 v34, 24, v33\nv_sub_u32 v34, v32, v34")
        a("v_bfe_u32 v35, v33, 1, 2\nv_lshlrev_b32 v35, 1, v35\nv_xor_b32 v34, v34, v35")
        kmap(a, 35, 33, 32)
        a("v_mul_u32_u24 v35, 3072, v35\nv_lshl_add_u32 v35, v34, 4, v35")
        a(f"s_mul_i32 s33, s13, 384\nv_add_u32 v{12+i}, s33, v35")
        a(f"s_lshl_b32 s33, s28, 10\ns_add_u32 s{36+i}, s33, {FW0}")
    wvoff(0)
    common_srds(a)
    a(f"s_lshl_b32 s48, s55, 7\ns_mul_i32 s49, s55, {64*3072}")
    D0 = dma_list(0); D1 = dma_list(1)
    srd(a, 24, 56, 640*1536*2)
    if gen.OPTS.get("touch0", 1):
        touch0_x(a, "f")
        a("s_cmp_lt_u32 s14, 3\ns_cbranch_scc0 f_n0w")
        a("s_and_b32 s29, s12, 7\ns_mul_i32 s29, s29, 24\nv_and_b32 v228, 31, v0\nv_add_u32 v228, s29, v228\nv_mul_u32_u24 v228, 3072, v228")
        a("s_lshl_b32 s28, s14, 7\ns_mul_i32 s29, s13, 384\ns_add_u32 s28, s28, s29")
        a("buffer_load_dword v229, v228, s[24:27], s28 offen")
        a.label("f_n0w")
    one_dma(D0[0]); one_dma(D0[1])
    one_dma(D0[2]); wvoff(1); one_dma(D0[3]); wvoff(2); one_dma(D0[4])
    VX = 16; VW = 20
    PRE = []
    for i in range(2):
        PRE.append(f"s_xor_b32 s28, s16, {i}\ns_lshl_b32 s29, s15, 1\ns_add_u32 s28, s28, s29\ns_mov_b32 s{70+i}, s28\ns_lshl_b32 s28, s28, 11\n"
                   f"v_add_u32 v{VX+2*i}, s28, v6\nv_add_u32 v{VX+2*i+1}, s28, v7")
    PRE.append(f"v_mul_u32_u24 v32, 384, v30\nv_and_b32 v33, 1, v9\nv_lshl_add_u32 v32, v33, 3, v32\nv_add_u32 v32, {FW0}, v32\n"
               "v_bfe_u32 v33, v30, 1, 2\nv_lshlrev_b32 v33, 1, v33\nv_lshrrev_b32 v34, 1, v9")
    for p in range(6):
        fts = [6*(w >> 2) + (p + 2*(w & 3)) % 6 for w in range(8)]
        PRE.append(bfe(72+p, fts) + f"\ns_lshl_b32 s28, s{72+p}, 1\nv_add_u32 v35, s28, v34\nv_xor_b32 v35, v35, v33\nv_lshl_add_u32 v{VW+p}, v35, 4, v32")
    VSUM, VSQ, VT = 26, 27, 30
    ACC = 36; OACC = 84; ONE = 92; SMF = 232
    a(f"v_mov_b32 v{VSUM}, 0\nv_mov_b32 v{VSQ}, 0")
    a(f"v_cmp_eq_u32 vcc, 0, v1\nv_mov_b32 v32, {ONES:#x}\ns_nop 1\nv_cndmask_b32 v{ONE}, 0, v32, vcc")
    for e in range(1, 4): a(f"v_mov_b32 v{ONE+e}, v{ONE}")
    STAT = FX; CS = STAT + 1280; PK = FW0 + 3*FWS
    E = dict(CSR=160, STR=168, L16=171, PK=172)
    t0, t1, t2, t3 = 224, 225, 226, 227
    SU = [f"v_lshlrev_b32 v{t0}, 4, v2", f"v_lshlrev_b32 v{t1}, 3, v1", f"v_lshlrev_b32 v{E['L16']}, 4, v0"]
    for p in range(6): SU.append(f"s_lshl_b32 s28, s{72+p}, 6\ns_add_u32 s28, s28, {CS}\nv_add_u32 v{E['CSR']+p}, s28, v{t0}")
    for i in range(2):
        SU.append(f"s_lshl_b32 s28, s{70+i}, 7\ns_add_u32 s28, s28, {STAT}\nv_add_u32 v{E['STR']+i}, s28, v{t1}")
        SU.append(f"s_lshl_b32 s28, s12, 3\ns_add_u32 s28, s28, s{70+i}\ns_mul_i32 s28, s28, 69632\ns_mul_i32 s29, s13, 6144\ns_add_u32 s{78+i}, s28, s29")
    SU.append(f"s_mov_b32 s80, s8\ns_and_b32 s81, s9, 0xffff\ns_mov_b32 s82, {A2_SIZE}\ns_mov_b32 s83, 0x20000")
    SU.append("s_lshl_b32 s64, s13, 4\ns_add_u32 s64, s64, s12\ns_cmp_lt_u32 s64, 68\ns_cselect_b32 s68, 5, 0")
    SU.append("s_sub_u32 s28, s64, 48\ns_mul_i32 s29, s28, 52\ns_lshr_b32 s29, s29, 8\ns_mul_i32 s30, s29, 5\ns_sub_u32 s30, s28, s30\n"
              "s_lshr_b32 s31, s30, 1\ns_mul_i32 s31, s31, 80\ns_and_b32 s33, s30, 1\ns_lshl_b32 s33, s33, 3\ns_add_u32 s31, s31, s33\n"
              "s_cmp_eq_u32 s30, 4\ns_cselect_b32 s31, 16, s31\ns_cselect_b32 s67, 80, 4\ns_mul_i32 s65, s29, 160\ns_add_u32 s65, s65, s31\ns_mov_b32 s66, 20\n"
              "s_lshl_b32 s28, s64, 5\ns_cmp_lt_u32 s64, 48\ns_cselect_b32 s65, s28, s65\ns_cselect_b32 s66, 4, s66\ns_cselect_b32 s67, 16, s67\n"
              f"s_cselect_b32 s40, s58, s60\ns_cselect_b32 s41, s59, s61\ns_and_b32 s41, s41, 0xffff\ns_cmp_lt_u32 s64, 48\ns_mov_b32 s42, {640*640*2}\ns_cselect_b32 s42, {1536*640*2}, s42\ns_mov_b32 s43, 0x20000")
    for i in range(5):
        SU.append(f"s_add_u32 s28, s14, {8*i}\ns_lshl_b32 s31, s28, 6\nv_add_u32 v{t0}, s31, v0")
        SU += [f"v_mul_u32_u24 v{t1}, 3277, v{t0}", f"v_lshrrev_b32 v{t1}, 18, v{t1}", f"v_mul_u32_u24 v{t2}, 80, v{t1}", f"v_sub_u32 v{t2}, v{t0}, v{t2}",
               f"v_lshrrev_b32 v{t3}, 4, v{t1}", f"v_mul_lo_u32 v{t3}, v{t3}, s67", f"v_bfe_u32 v{t0}, v{t1}, 2, 2", f"v_mul_lo_u32 v{t0}, v{t0}, s66",
               f"v_and_b32 v{t1}, 3, v{t1}", f"v_add3_u32 v{t3}, v{t3}, v{t0}, v{t1}", f"v_add_u32 v{t3}, s65, v{t3}",
               f"v_mul_u32_u24 v{t3}, 1280, v{t3}", f"v_lshl_add_u32 v{174+i}, v{t2}, 4, v{t3}"]
    SU.append(f"s_add_u32 s44, s8, {W2F_OFF}\ns_addc_u32 s45, s9, 0\ns_and_b32 s45, s45, 0xffff\ns_mov_b32 s46, {W2F_SIZE}\ns_mov_b32 s47, 0x20000")
    SU += [f"v_lshrrev_b32 v{t0}, 2, v0", f"v_mul_u32_u24 v{t0}, 1280, v{t0}", f"s_mul_i32 s28, s14, 160\ns_add_u32 s28, s28, {PK}\nv_add_u32 v{t0}, s28, v{t0}",
           f"v_lshl_add_u32 v{E['PK']}, v9, 4, v{t0}", f"v_lshl_add_u32 v{E['PK']+1}, v9, 3, v{t0}",
           "s_mul_i32 s28, s14, 348160\ns_mul_i32 s29, s64, 5120\ns_add_u32 s69, s28, s29"]
    ipk = next(i for i, x in enumerate(SU) if x.startswith("s_lshl_b32 s64, s13, 4"))
    allp = PRE + SU[:ipk]
    nl = [x.count("\n")+1 for x in allp]; tot = sum(nl); acc = 0; k = 0
    for x, n_ in zip(allp, nl):
        while k < 5 and acc >= (k*tot)//5: one_dma(D1[k]); k += 1
        a(x); acc += n_
    while k < 5: one_dma(D1[k]); k += 1
    touch_x(a, "f")
    if not not gen.OPTS.get("touch"):
        a("s_cmp_ge_u32 s14, 4\ns_cbranch_scc0 f_ntw1\ns_cmp_lt_u32 s14, 7\ns_cbranch_scc0 f_ntw2")
        a("s_sub_u32 s28, s14, 4\ns_lshl_b32 s28, s28, 7\ns_mul_i32 s29, s13, 384\ns_add_u32 s28, s28, s29")
        a("s_and_b32 s29, s12, 7\ns_lshl_b32 s29, s29, 6\ns_add_u32 s29, s29, 128\nv_add_u32 v228, s29, v0\nv_mul_u32_u24 v228, 3072, v228")
        a("buffer_load_dword v229, v228, s[24:27], s28 offen")
        a("s_branch f_ntw2")
        a.label("f_ntw1")
        a("s_lshl_b32 s28, s13, 4\ns_add_u32 s28, s28, s12\ns_cmp_lt_u32 s28, 96")
        a(f"s_cselect_b32 s40, s58, s60\ns_cselect_b32 s41, s59, s61\ns_cselect_b32 s29, 0, 96\ns_mov_b32 s30, 25600\ns_cselect_b32 s30, 20480, s30\ns_mov_b32 s42, {640*640*2}\ns_cselect_b32 s42, {1536*640*2}, s42")
        a("s_and_b32 s41, s41, 0xffff\ns_mov_b32 s43, 0x20000\ns_sub_u32 s28, s28, s29\ns_mul_i32 s28, s28, s30\ns_lshl_b32 s29, s14, 13\ns_add_u32 s28, s28, s29\nv_lshlrev_b32 v228, 7, v0")
        a("buffer_load_dword v229, v228, s[40:43], s28 offen")
        a.label("f_ntw2")
    SUH = [[] for _ in range(2*NST)]
    rest = SU[ipk:]
    for t_, x in enumerate(rest): SUH[1 + (t_*13)//len(rest)].append(x)
    SET = [96, 128]
    def read_list(st, stg, ks):
        B = SET[st]; R = []; sl = stg % 3
        tr = lambda p: [f"ds_read_b64_tr_b16 v[{B+8+4*p+2*h}:{B+9+4*p+2*h}], v{VW+p} offset:{sl*FWS+(32*ks+8*h)*384}" for h in range(2)]
        R += tr(0); R.append(f"ds_read_b128 v[{B}:{B+3}], v{VX+ks} offset:{sl*FX}"); R.append(f"ds_read_b128 v[{B+4}:{B+7}], v{VX+2+ks} offset:{sl*FX}")
        for p in range(1, 6): R += tr(p)
        return R
    def mfma_list(st, first):
        B = SET[st]; M = []
        c = lambda r: "0" if first else f"v[{r}:{r+3}]"
        for p in range(6):
            for i in range(2):
                r = ACC+24*i+4*p
                M.append(f"v_mfma_f32_16x16x32_bf16 v[{r}:{r+3}], v[{B+8+4*p}:{B+11+4*p}], v[{B+4*i}:{B+4*i+3}], {c(r)}")
            if p < 2:
                r = OACC+4*p
                M.append(f"v_mfma_f32_16x16x32_bf16 v[{r}:{r+3}], v[{B+8+4*p}:{B+11+4*p}], v[{ONE}:{ONE+3}], {c(r)}")
        M.insert(1, f"v_mfma_f32_16x16x32_bf16 v[{SMF}:{SMF+3}], v[{ONE}:{ONE+3}], v[{B}:{B+3}], {c(SMF)}")
        return M
    a("s_waitcnt vmcnt(5)\ns_barrier")
    gen.stamp(a)
    L = Asm()
    emit(L, read_list(0, 0, 0))
    for s in range(NST):
        last = s == NST-1
        Da = (dma_list(2) if s == 0 else dma_list(s+2)[2:]) if s+2 < NST else []
        Db = dma_list(s+3)[:2] if s+3 < NST else []
        emit(L, sched(mfma_list(0, s == 0), R=read_list(1, s, 1), V=sq_valu(SET[0], VSQ, VT), D=Da, lead=0, X=SUH[2*s]))
        if not last: L(f"s_waitcnt vmcnt({5 if s < NST-2 else 0})\ns_barrier")
        if gen.OPTS.get("stamps") and not gen.OPTS.get("nostage"):
            L("s_waitcnt lgkmcnt(0)"); L("; STAMP")
        V = sq_valu(SET[1], VSQ, VT)
        if last: V = V + reduce_g_list(VSQ, VT+1) + [f"v_mov_b32 v{VSUM}, v{SMF}"] + finish_stats_list(VSUM, VSQ, VT)
        emit(L, sched(mfma_list(1, False), R=read_list(0, s+1, 0) if not last else [], V=V, D=Db, lead=1, X=SUH[2*s+1]))
        if s == 7:
            L("s_cmp_eq_u32 s68, 5\ns_cbranch_scc0 f_pack_skip")
            for i in range(5):
                L(f"s_add_u32 s28, s14, {8*i}\ns_lshl_b32 s33, s28, 10\ns_add_u32 m0, s33, {PK}\ns_nop 0\nbuffer_load_dwordx4 v{174+i}, s[40:43], 0 offen lds")
            L.label("f_pack_skip")
    lines, q = auto_lgkm(L.lines)
    for l in lines:
        if l == "; STAMP": gen.stamp(a)
        else: a(l)
    gen.stamp(a)
    a("s_mov_b64 exec, 0xffff")
    a(f"ds_write_b64 v{E['STR']}, v[{VSUM}:{VSQ}]")
    a("s_mov_b32 exec_lo, 0x00010001\ns_mov_b32 exec_hi, 0x00010001")
    for p in range(2): a(f"ds_write_b128 v{E['CSR']+p}, v[{OACC+4*p}:{OACC+4*p+3}]")
    a("s_mov_b64 exec, -1")
    a("s_waitcnt vmcnt(0) lgkmcnt(0)\ns_barrier")
    gen.stamp(a)
    ST = 96; CSR = 100
    for i in range(2): a(f"ds_read_b64 v[{ST+2*i}:{ST+2*i+1}], v{E['STR']+i}")
    for p in range(6): a(f"ds_read_b128 v[{CSR+4*p}:{CSR+4*p+3}], v{E['CSR']+p}")
    fl = gen.OPTS.get("stf", "")
    a("s_cmp_eq_u32 s68, 5\ns_cbranch_scc0 f_nopack")
    PR = 128
    for nt in range(5):
        for h in range(2):
            if nt < 4: a(f"ds_read_b64_tr_b16 v[{PR+4*nt+2*h}:{PR+4*nt+2*h+1}], v{E['PK']} offset:{h*16*1280 + 64*(nt>>1) + 8*(nt&1)}")
            else: a(f"ds_read_b64_tr_b16 v[{PR+4*nt+2*h}:{PR+4*nt+2*h+1}], v{E['PK']+1} offset:{h*16*1280 + 128}")
    a("s_waitcnt lgkmcnt(0)")
    for nt in range(5):
        if nt < 4: a(f"buffer_store_dwordx4 v[{PR+4*nt}:{PR+4*nt+3}], v{E['L16']}, s[44:47], s69 offen offset:{nt*1024} {fl}")
        else: a(f"s_add_u32 s69, s69, 4096\nbuffer_store_dwordx4 v[{PR+4*nt}:{PR+4*nt+3}], v{E['L16']}, s[44:47], s69 offen {fl}")
    a.label("f_nopack")
    a("s_waitcnt lgkmcnt(0)")
    T0 = 148
    for i in range(2):
        st = ST+2*i
        for q in range(3):
            r0 = ACC+24*i+8*q
            cs0 = CSR+8*q
            T = T0
            for e in range(0, 8, 2): a(f"v_pk_mul_f32 v[{T+e}:{T+e+1}], v[{cs0+e}:{cs0+e+1}], v[{st}:{st+1}] op_sel:[0,1] op_sel_hi:[1,1]")
            for e in range(0, 8, 2): a(f"v_pk_fma_f32 v[{r0+e}:{r0+e+1}], v[{r0+e}:{r0+e+1}], v[{st}:{st+1}], v[{T+e}:{T+e+1}] op_sel_hi:[1,0,1] neg_lo:[0,0,1] neg_hi:[0,0,1]")
            for e in range(8): a(f"v_mul_f32 v{T+e}, {f2u(-LOG2E):#x}, v{r0+e}")
            for e in range(8): a(f"v_exp_f32 v{T+e}, v{T+e}")
            for e in range(8): a(f"v_add_f32 v{T+e}, 1.0, v{T+e}")
            for e in range(8): a(f"v_rcp_f32 v{T+e}, v{T+e}")
            for e in range(8): a(f"v_mul_f32 v{r0+e}, v{r0+e}, v{T+e}")
            D = T0+8+4*(q & 1)
            a(f"v_cvt_pk_bf16_f32 v{D}, v{r0}, v{r0+1}\nv_cvt_pk_bf16_f32 v{D+1}, v{r0+2}, v{r0+3}\nv_cvt_pk_bf16_f32 v{D+2}, v{r0+4}, v{r0+5}\nv_cvt_pk_bf16_f32 v{D+3}, v{r0+6}, v{r0+7}")
            a(f"s_lshl_b32 s28, s{72+2*q}, 9\ns_add_u32 s28, s28, s{78+i}")
            a(f"buffer_store_dwordx4 v[{D}:{D+3}], v{E['L16']}, s[80:83], s28 offen {fl}")
```

```python
import sys, struct
from asmlib import Asm, fix_hazards

KN = "recurrent_scan__sliding_local_dilated__dense_activation_silu__prompt"
A2_OFF  = 0
A2_SIZE = 128*68*1024
W2F_OFF = 16 << 20
W2F_SIZE = 8*68*5*1024
def f2u(x): return struct.unpack("<I", struct.pack("<f", x))[0]
LOG2E = 1.4426950408889634

def srd(a, d, lo, nbytes, off=None):
    if off:
        a(f"s_add_u32 s{d}, s{lo}, {off}\ns_addc_u32 s{d+1}, s{lo+1}, 0\ns_and_b32 s{d+1}, s{d+1}, 0xffff")
    else:
        a(f"s_mov_b32 s{d}, s{lo}\ns_and_b32 s{d+1}, s{lo+1}, 0xffff")
    a(f"s_mov_b32 s{d+2}, {nbytes}\ns_mov_b32 s{d+3}, 0x20000")


P2_SLOT = 36864
P2_NSLOT = 4
P2_LDS = P2_SLOT*P2_NSLOT
OPTS = {}
STAMP_OFF = 64 << 20
def stamp_init(a, sreg_ws_lo, koff=0):
    a(f"s_add_u32 s88, s{sreg_ws_lo}, {STAMP_OFF+koff}\ns_addc_u32 s89, s{sreg_ws_lo+1}, 0\ns_and_b32 s89, s89, 0xffff\ns_mov_b32 s90, 0x100000\ns_mov_b32 s91, 0x20000\nv_mov_b32 v250, 0\ns_mov_b32 s92, 0")
def rstamp(a, lane):
    if not OPTS.get("stamps"): return
    a(f"s_memrealtime s[94:95]\ns_waitcnt lgkmcnt(0)\nv_mov_b32 v251, s94\nv_cmp_eq_u32 vcc, {lane}, v0\nv_cndmask_b32 v250, v250, v251, vcc")
def stamp(a):
    if not OPTS.get("stamps"): return
    if OPTS.get("nostage") and getattr(a, "instage", False): return
    a("s_memtime s[94:95]\ns_waitcnt lgkmcnt(0)\ns_sub_u32 s94, s94, s62\nv_mov_b32 v251, s94\nv_cmp_eq_u32 vcc, s92, v0\nv_cndmask_b32 v250, v250, v251, vcc\ns_add_u32 s92, s92, 1")
def stamp_dump(a, swave):
    if not OPTS.get("stamps"): return
    rstamp(a, 63)
    a(f"s_lshl_b32 s93, s2, 3\ns_add_u32 s93, s93, s{swave}\ns_lshl_b32 s93, s93, 8\nv_lshlrev_b32 v251, 2, v0\nbuffer_store_dword v250, v251, s[88:91], s93 offen")
def gen_p2(a, name="p2_kernel", dbg=False):
    a(f".globl {name}\n.p2align 8\n.type {name},@function\n{name}:")
    a("s_cmp_ge_u32 s2, 256\ns_cbranch_scc1 p2_done")
    a("s_load_dwordx2 s[4:5], s[0:1], 64")
    a("s_load_dwordx2 s[6:7], s[0:1], 0")
    a("s_load_dwordx2 s[8:9], s[0:1], 48")
    if dbg: a("s_load_dwordx2 s[60:61], s[0:1], 56\ns_memtime s[62:63]")
    a("s_and_b32 s10, s2, 7\ns_lshr_b32 s11, s2, 3")
    a("s_lshr_b32 s12, s10, 1\ns_lshl_b32 s12, s12, 3\ns_and_b32 s13, s11, 7\ns_add_u32 s12, s12, s13")
    a("s_and_b32 s13, s10, 1\ns_lshl_b32 s13, s13, 2\ns_lshr_b32 s14, s11, 3\ns_add_u32 s13, s13, s14")
    a("v_lshrrev_b32 v1, 6, v0\nv_and_b32 v0, 63, v0\ns_nop 0\nv_readfirstlane_b32 s14, v1")
    a("v_lshlrev_b32 v2, 4, v0")
    a("s_and_b32 s15, s14, 3\ns_lshr_b32 s16, s14, 2")
    a("s_lshl_b32 s17, s12, 2\ns_add_u32 s17, s17, s15")
    a("s_mul_i32 s18, s17, 69632\ns_lshl_b32 s19, s16, 11\ns_add_u32 s18, s18, s19")
    a("s_mul_i32 s19, s13, 348160")
    a("s_lshl_b32 s20, s14, 10\ns_lshl_b32 s23, s16, 13\ns_add_u32 s20, s20, s23")
    a("s_add_u32 s21, s20, 4096\ns_add_u32 s22, s20, 8192")
    a("s_lshl_b32 s26, s14, 11\ns_add_u32 s26, s26, 20480")
    a("s_waitcnt lgkmcnt(0)")
    srd(a, 28, 4, A2_SIZE, None) if A2_OFF == 0 else srd(a, 28, 4, A2_SIZE, A2_OFF)
    srd(a, 32, 4, W2F_SIZE, W2F_OFF)
    if OPTS.get("stamps"): stamp_init(a, 4, 1<<20); rstamp(a, 62)
    if OPTS.get("hot"): a("s_and_b32 s18, s18, 0xfff\ns_mov_b32 s19, 0")
    stamp(a)
    NPRO = 4
    a("s_mov_b32 s36, 0")
    a("s_and_b32 s57, s11, 7\ns_lshr_b32 s56, s11, 3\ns_mul_i32 s56, s56, 3\ns_add_u32 s57, s57, s56\ns_cmp_ge_u32 s57, 12\ns_cselect_b32 s56, 12, 0\ns_sub_u32 s57, s57, s56")
    if not OPTS.get("rot2"): a("s_mov_b32 s57, 0")
    a("s_mov_b32 s56, 0\ns_mov_b32 s54, s18\ns_mov_b32 s55, s19\ns_lshl_b32 s18, s57, 12\ns_add_u32 s18, s18, s54\ns_mul_i32 s19, s57, 20480\ns_add_u32 s19, s19, s55")
    def dma_list(nw):
        D = [
         "s_add_u32 m0, s36, s26\ns_nop 0\nbuffer_load_dwordx4 v2, s[28:31], s18 offen lds",
         "s_add_u32 m0, s36, s26\ns_nop 0\nbuffer_load_dwordx4 v2, s[28:31], s18 offen offset:1024 lds",
         "s_add_u32 m0, s36, s20\ns_add_u32 s27, s19, s20\nbuffer_load_dwordx4 v2, s[32:35], s27 offen lds",
         "s_add_u32 m0, s36, s21\ns_add_u32 s27, s19, s21\nbuffer_load_dwordx4 v2, s[32:35], s27 offen lds"]
        if nw == 3: D.append("s_add_u32 m0, s36, s22\ns_add_u32 s27, s19, s22\nbuffer_load_dwordx4 v2, s[32:35], s27 offen lds")
        D[-1] += (f"\ns_add_u32 s36, s36, {P2_SLOT}\ns_cmp_eq_u32 s36, {P2_LDS}\ns_cselect_b32 s36, 0, s36"
                  "\ns_add_u32 s56, s56, 1\ns_add_u32 s57, s57, 1\ns_cmp_eq_u32 s57, 12\ns_cselect_b32 s57, 0, s57\ns_cmp_eq_u32 s56, 12\ns_cselect_b32 s57, 12, s57"
                  "\ns_cmp_gt_u32 s56, 12\ns_cselect_b32 s57, s56, s57"
                  "\ns_lshl_b32 s18, s57, 12\ns_add_u32 s18, s18, s54\ns_mul_i32 s19, s57, 20480\ns_add_u32 s19, s19, s55")
        return D
    a("s_cmp_eq_u32 s16, 0\ns_cbranch_scc0 p2_pro1")
    for i in range(NPRO):
        for x in dma_list(3): a(x)
    a("s_branch p2_pro2")
    a.label("p2_pro1")
    for i in range(NPRO):
        for x in dma_list(2): a(x)
    a.label("p2_pro2")
    a("s_lshr_b32 s38, s12, 1\ns_lshl_b32 s38, s38, 7\ns_and_b32 s39, s12, 1\ns_add_u32 s38, s38, s39\ns_lshl_b32 s39, s15, 5\ns_add_u32 s38, s38, s39")
    a("v_and_b32 v3, 15, v0\nv_lshlrev_b32 v3, 1, v3\nv_add_u32 v3, s38, v3\nv_mul_u32_u24 v3, 1280, v3")
    a("v_lshrrev_b32 v4, 4, v0")
    a("s_mul_i32 s39, s13, 160\nv_add_u32 v3, s39, v3")
    a("v_lshlrev_b32 v5, 4, v4\nv_add_u32 v5, v3, v5\ns_lshl_b32 s39, s16, 6\nv_add_u32 v5, s39, v5")
    a("v_lshlrev_b32 v6, 3, v4\nv_add_u32 v6, v3, v6\nv_add_u32 v6, 128, v6")
    srd(a, 40, 6, 2621440); srd(a, 44, 8, 2621440)
    a("buffer_load_dwordx4 v[8:11], v5, s[40:43], 0 offen")
    a("buffer_load_dwordx2 v[12:13], v6, s[40:43], 0 offen")
    XL = 2
    for r in range(16, 40): a(f"v_mov_b32 v{r}, 0")
    a("v_mov_b32 v14, v2")
    a("s_lshl_b32 s39, s15, 11\ns_add_u32 s39, s39, 20480\nv_add_u32 v15, s39, v2")
    a("s_mov_b32 s48, 0\ns_mov_b32 s49, 0")
    a(f"s_mov_b32 s52, {(-P2_LDS+P2_SLOT) & 0xffffffff}\ns_mov_b32 s53, {P2_SLOT}")
    SETS = [40, 104]
    def read_list(st, tiles):
        B = SETS[st]; R = []
        for ks in range(4):
            R.append(f"ds_read_b128 v[{B+4*ks}:{B+4*ks+3}], v15 offset:{(ks>>1)*8192+(ks&1)*1024}")
            for i, nt in enumerate(tiles):
                r = B+16+4*(ks*len(tiles)+i)
                R.append(f"ds_read_b128 v[{r}:{r+3}], v14 offset:{ks*5120+nt*1024}")
        return R
    def mfma_list(st, tiles, acc):
        B = SETS[st]; M = []
        for ks in range(4):
            for i, nt in enumerate(tiles):
                r = B+16+4*(ks*len(tiles)+i)
                M.append(f"v_mfma_f32_16x16x32_bf16 v[{acc+4*i}:{acc+4*i+3}], v[{r}:{r+3}], v[{B+4*ks}:{B+4*ks+3}], v[{acc+4*i}:{acc+4*i+3}]")
        return M
    ADV = (f"s_add_u32 s48, s48, {P2_SLOT}\ns_cmp_eq_u32 s48, {P2_LDS}\ns_cselect_b32 s50, s52, s53\ns_cselect_b32 s48, 0, s48\n"
           "v_add_u32 v14, s50, v14\nv_add_u32 v15, s50, v15")
    def merge(M, R, D):
        out = []
        n = max(len(M), 1)
        ri = 0; di = 0
        if D: out.append(D[0]); di = 1
        for i in range(len(M)):
            tgt = ((i+1)*len(R) + n - 1)//n
            while ri < tgt: out.append(R[ri]); ri += 1
            out.append(M[i])
            tgd = 1 + ((i+1)*(len(D)-1))//n if D else 0
            while di < tgd: out.append(D[di]); di += 1
        while ri < len(R): out.append(R[ri]); ri += 1
        while di < len(D): out.append(D[di]); di += 1
        return out
    def body(a, st, tiles, acc, wait, do_issue, do_read, nw):
        if wait is not None: a(f"s_waitcnt vmcnt({wait}) lgkmcnt(0)")
        else: a("s_waitcnt lgkmcnt(0)")
        if do_read: a("s_barrier")
        a.instage = True; stamp(a); a.instage = False
        M = mfma_list(st, tiles, acc)
        R = read_list(1-st, tiles) if do_read else []
        D = dma_list(nw) if do_issue else []
        for x in merge(M, R, D): a(x)
        if do_read: a(ADV)
    def path(a, tag, tiles, nw):
        NI = 2 + nw
        a(f"s_waitcnt vmcnt({3*NI+XL})\ns_barrier")
        for x in read_list(0, tiles): a(x)
        a(ADV)
        a.label(f"p2_{tag}_loop")
        body(a, 0, tiles, 28, 2*NI, True, True, nw)
        body(a, 1, tiles, 28, 2*NI, True, True, nw)
        a(f"s_add_u32 s49, s49, 2\ns_cmp_lt_u32 s49, 12\ns_cbranch_scc1 p2_{tag}_loop")
        body(a, 0, tiles, 16, 2*NI, True, True, nw)
        body(a, 1, tiles, 16, 2*NI, False, True, nw)
        body(a, 0, tiles, 16, NI, False, True, nw)
        body(a, 1, tiles, 16, 0, False, True, nw)
        body(a, 0, tiles, 16, None, False, False, nw)
        stamp(a)
    def fin(a, S, F, X, n):
        T = 40
        for e in range(n): a(f"v_mul_f32 v{T+e}, {f2u(-LOG2E):#x}, v{F+e}")
        for e in range(n): a(f"v_exp_f32 v{T+e}, v{T+e}")
        for e in range(n): a(f"v_mul_f32 v{F+e}, v{F+e}, v{S+e}")
        for e in range(0, n, 2):
            a(f"v_lshlrev_b32 v{T+16+e}, 16, v{X+e//2}\nv_and_b32 v{T+17+e}, 0xffff0000, v{X+e//2}")
        for e in range(n): a(f"v_add_f32 v{T+e}, 1.0, v{T+e}")
        for e in range(n): a(f"v_rcp_f32 v{T+e}, v{T+e}")
        for e in range(n): a(f"v_fmac_f32 v{T+16+e}, v{F+e}, v{T+e}")
        for e in range(0, n, 2): a(f"v_cvt_pk_bf16_f32 v{X+e//2}, v{T+16+e}, v{T+17+e}")
    a("s_cmp_eq_u32 s16, 0\ns_cbranch_scc0 p2_path1")
    path(a, "c0", [0, 1, 4], 3)
    fin(a, 16, 28, 8, 12)
    a("buffer_store_dwordx4 v[8:11], v5, s[44:47], 0 offen")
    a("buffer_store_dwordx2 v[12:13], v6, s[44:47], 0 offen")
    a("s_branch p2_end")
    a.label("p2_path1")
    path(a, "c1", [2, 3], 2)
    fin(a, 16, 28, 8, 8)
    a("buffer_store_dwordx4 v[8:11], v5, s[44:47], 0 offen")
    a.label("p2_end")
    stamp(a); stamp_dump(a, 14)
    if dbg:
        a("s_memtime s[64:65]\ns_waitcnt vmcnt(0) lgkmcnt(0)\ns_sub_u32 s64, s64, s62")
        a("s_mov_b32 s68, s60\ns_and_b32 s69, s61, 0xffff\ns_mov_b32 s70, 256\ns_mov_b32 s71, 0x20000")
        a("s_cmp_lt_u32 s2, 64\ns_cbranch_scc0 p2_done\ns_cmp_eq_u32 s14, 0\ns_cbranch_scc0 p2_done")
        a("v_mov_b32 v2, s64\ns_lshl_b32 s3, s2, 2\nv_mov_b32 v3, s3\nv_cmp_eq_u32 vcc, 0, v0\ns_and_saveexec_b64 s[66:67], vcc\nbuffer_store_dword v2, v3, s[68:71], 0 offen")
    a.label("p2_done")
    a("s_endpgm")

def kd(name, nv=256, ns=96):
    return f""".p2align 6
.amdhsa_kernel {name}
  .amdhsa_next_free_vgpr {nv}
  .amdhsa_next_free_sgpr {ns}
  .amdhsa_accum_offset {min(256,(nv+3)//4*4)}
  .amdhsa_group_segment_fixed_size 0
  .amdhsa_kernarg_size 72
  .amdhsa_user_sgpr_count 2
  .amdhsa_user_sgpr_kernarg_segment_ptr 1
  .amdhsa_system_sgpr_workgroup_id_x 1
.end_amdhsa_kernel"""

def build(kernels, out, dbg=False):
    hdr = []
    body = Asm()
    kds = []
    for k in kernels:
        if k == "p2":
            hdr.append(f"; @launch kernel=p2_kernel grid=(256,1,1) block=(512,1,1) lds={P2_LDS}")
            gen_p2(body, dbg=dbg); kds.append(kd("p2_kernel", 256 if OPTS.get("stamps") else 168))
        elif k == "p1":
            from gen_p1 import gen_p1, P1_LDS
            hdr.append(f"; @launch kernel=p1_kernel grid=(256,1,1) block=(512,1,1) lds={P1_LDS}")
            gen_p1(body, dbg=dbg); kds.append(kd("p1_kernel", 256))
    lines = fix_hazards(body.lines)
    txt = "\n".join(hdr) + '\n.amdgcn_target "amdgcn-amd-amdhsa--gfx950"\n.text\n' + "\n".join(lines) + '\n.section .rodata,"a"\n' + "\n".join(kds) + "\n"
    open(out, "w").write(txt)

def main():
    out = sys.argv[1]; ks = sys.argv[2].split(","); dbg = "dbg" in sys.argv[3:]
    for o in sys.argv[3:]:
        if "=" in o:
            k, v = o.split("="); OPTS[k] = int(v) if v.lstrip("-").isdigit() else v.replace("+", " ")
        else: OPTS[o] = 1
    build(ks, out, dbg)

if __name__ == "__main__":
    import gen
    gen.main()
```

```python
from gen import *
import gen
from asmlib import auto_lgkm, Asm
P1_LDS = 163840
ONES = 0x3F803F80
EPS = 1e-5
NST = 10

def sched(M, R=(), V=(), D=(), lead=1, rspan=0.6, X=(), tail=2):
    if gen.OPTS.get("nostats"): V = []
    if gen.OPTS.get("nodma"): D = []
    if gen.OPTS.get("noreads"): R = []
    n = len(M)
    R = list(R); V = list(V); X = list(X); D = list(D)
    pre = []
    if lead == 0 and R: pre = [R.pop(0)]
    seq = [("r", r) for r in R]
    for t, d in enumerate(D):
        pos = min(len(seq), 1 + (t*(len(R)+len(D)))//len(D) + t*0)
        seq.insert(min(pos, len(seq)), ("d", d))
    nd = len(seq); slotsD = max(1, n - tail)
    x = max(0, nd - slotsD)
    dplan = [0]*n; left = nd
    for i in range(n):
        k = 2 if i < x else 1
        k = min(k, left); dplan[i] = k; left -= k
    i = 0
    while left > 0:
        dplan[i] += 1; left -= 1; i += 1
    nv = len(V)
    cap = [0 if dplan[i] == 2 else 2 for i in range(n)]
    tot = sum(cap); i = n-1
    while tot < nv:
        cap[i] += 1; tot += 1; i -= 1
        if i < 0: i = n-1
    spare = tot - nv
    gaps = [[] for _ in range(n)]; pres = [[] for _ in range(n+1)]
    si = 0
    for i in range(n):
        for _ in range(dplan[i]):
            kind, it = seq[si]; si += 1
            if kind == "r": gaps[i].append(it)
            else:
                assert not pres[i], "two DMAs in one gap"
                pres[i].append(it[0])
                gaps[i].append(it[1])
    vi = 0
    for i in range(n):
        rem_cap = sum(cap[i:]); rem_v = nv - vi
        k = min(cap[i], rem_v) if rem_cap <= rem_v else min(cap[i], rem_v, -(-rem_v*cap[i]//max(rem_cap, 1)))
        gaps[i] += V[vi:vi+k]; vi += k
    assert vi == nv, (vi, nv)
    for t, xx in enumerate(X):
        pos = (t*n)//max(len(X), 1)
        gaps[pos].append(xx)
    out = list(pre)
    for i in range(n):
        out += pres[i]; out.append(M[i]); out += gaps[i]
    return out

SMASK = 87
def stats_valu(S, vsum, vsq, t0, nd=4):
    V = []
    for d in range(nd):
        lo, hi = t0 + (d & 1)*2, t0 + (d & 1)*2 + 1
        V += [f"v_lshlrev_b32 v{lo}, 16, v{S+d}", f"v_and_b32 v{hi}, s{SMASK}, v{S+d}",
              f"v_add_f32 v{vsum}, v{vsum}, v{lo}", f"v_fmac_f32 v{vsq}, v{lo}, v{lo}",
              f"v_add_f32 v{vsum}, v{vsum}, v{hi}", f"v_fmac_f32 v{vsq}, v{hi}, v{hi}"]
    return V
def sq_valu(S, vsq, t0):
    V = []
    for d in range(4):
        lo, hi = t0 + (d & 1)*2, t0 + (d & 1)*2 + 1
        V += [f"v_lshlrev_b32 v{lo}, 16, v{S+d}", f"v_and_b32 v{hi}, s{SMASK}, v{S+d}", f"v_fmac_f32 v{vsq}, v{lo}, v{lo}", f"v_fmac_f32 v{vsq}, v{hi}, v{hi}"]
    return V
def reduce_g_list(v, t):
    return [f"v_mov_b32 v{t}, v{v}", "s_nop 1", f"v_permlane32_swap_b32 v{t}, v{v}", "s_nop 1", f"v_add_f32 v{v}, v{v}, v{t}",
            f"v_mov_b32 v{t}, v{v}", "s_nop 1", f"v_permlane16_swap_b32 v{t}, v{v}", "s_nop 1", f"v_add_f32 v{v}, v{v}, v{t}"]
def rbf_list(d, s):
    return [f"v_cvt_pk_bf16_f32 v{d}, v{s}, v{s}", f"v_and_b32 v{d}, s{SMASK}, v{d}"]
def finish_stats_list(vsum, vsq, t):
    L = [f"v_mul_f32 v{vsum}, {f2u(1/640):#x}, v{vsum}", f"v_mul_f32 v{vsq}, {f2u(1/640):#x}, v{vsq}",
         f"v_fma_f32 v{vsq}, -v{vsum}, v{vsum}, v{vsq}", f"v_max_f32 v{vsq}, 0, v{vsq}"]
    L += rbf_list(vsum, vsum) + rbf_list(vsq, vsq)
    L += [f"v_add_f32 v{vsq}, {f2u(EPS):#x}, v{vsq}"] + rbf_list(vsq, vsq)
    L += [f"v_sqrt_f32 v{vsq}, v{vsq}", "s_nop 0"] + rbf_list(vsq, vsq)
    L += [f"v_rcp_f32 v{t}, v{vsq}", "s_nop 0", f"v_mul_f32 v{vsq}, v{vsum}, v{t}", f"v_mov_b32 v{vsum}, v{t}"]
    return L
def zip2(A, B):
    out = []
    for x, y in zip(A, B):
        if x.startswith("s_nop") and y.startswith("s_nop"): continue
        out += [x, y]
    return out
def emit(a, L):
    for x in L: a(x)
def kmap(a, dst, rho, t):
    a(f"v_and_b32 v{dst}, 0xfffffff3, v{rho}\nv_and_b32 v{t}, 4, v{rho}\nv_lshl_or_b32 v{dst}, v{t}, 1, v{dst}\nv_bfe_u32 v{t}, v{rho}, 3, 1\nv_lshl_or_b32 v{dst}, v{t}, 2, v{dst}")

def adv(stg):
    NLK = gen.OPTS.get("nlk", 2)
    if stg + 1 < NLK: return f"s_mov_b32 s55, {stg+1}"
    if stg + 1 == NLK: return "s_mov_b32 s55, s54"
    return f"s_add_u32 s55, s55, 1\ns_cmp_eq_u32 s55, 10\ns_cselect_b32 s55, {NLK}, s55"

def nib(vals):
    assert len(vals) == 8 and all(0 <= v < 16 for v in vals)
    return sum(v << (4*i) for i, v in enumerate(vals))
def bfe(dst, vals): return f"s_bfe_u32 s{dst}, {nib(vals):#x}, s19"

def gen_p1(a, name="p1_kernel", dbg=False, fused=False):
    OPTS = gen.OPTS
    gen.FUSED = fused
    a(f".globl {name}\n.p2align 8\n.type {name},@function\n{name}:")
    a("s_cmp_ge_u32 s2, 256\ns_cbranch_scc1 p1_done")
    a("s_load_dwordx4 s[4:7], s[0:1], 0")
    a("s_load_dwordx2 s[8:9], s[0:1], 64")
    a("s_load_dwordx4 s[56:59], s[0:1], 32")
    a("s_load_dwordx2 s[60:61], s[0:1], 16")
    if dbg or fused: a("s_load_dwordx2 s[84:85], s[0:1], 56")
    if fused: a("s_load_dwordx2 s[96:97], s[0:1], 48")
    if dbg or OPTS.get("stamps"): a("s_memtime s[62:63]")
    if dbg: a("s_memrealtime s[98:99]")
    a("s_and_b32 s10, s2, 7\ns_lshr_b32 s11, s2, 3")
    a("v_lshrrev_b32 v1, 6, v0\nv_and_b32 v0, 63, v0")
    a("s_and_b32 s12, s10, 1\ns_lshl_b32 s12, s12, 3\ns_and_b32 s13, s11, 7\ns_add_u32 s12, s12, s13")
    a("v_readfirstlane_b32 s14, v1")
    a("s_lshr_b32 s13, s10, 1\ns_lshr_b32 s15, s11, 3\ns_lshl_b32 s15, s15, 2\ns_add_u32 s13, s13, s15")
    a("v_and_b32 v1, 15, v0\nv_lshrrev_b32 v2, 4, v0")
    a("v_lshrrev_b32 v3, 3, v0\nv_and_b32 v4, 7, v0\nv_xor_b32 v4, v4, v3\nv_lshlrev_b32 v4, 4, v4")
    a(f"s_mov_b32 s{SMASK}, 0xffff0000")
    a("s_and_b32 s15, s14, 3\ns_lshr_b32 s16, s14, 2\ns_lshl_b32 s19, s14, 2\ns_add_u32 s19, s19, 0x40000")
    a("s_lshl_b32 s17, s12, 7\ns_lshl_b32 s18, s15, 5\ns_add_u32 s17, s17, s18\ns_add_u32 s17, s17, s16")
    a("v_lshlrev_b32 v5, 1, v3\nv_add_u32 v5, s17, v5\nv_mul_u32_u24 v10, 1280, v5\nv_add_u32 v10, v10, v4")
    a("v_add_u32 v11, 20480, v10")
    a("s_lshl_b32 s34, s14, 11\ns_add_u32 s35, s34, 1024")
    a("v_and_b32 v6, 7, v1\nv_xor_b32 v6, v6, v2\nv_lshlrev_b32 v6, 4, v6\nv_lshl_add_u32 v6, v1, 7, v6")
    a("v_xor_b32 v7, 64, v6")
    a("v_bfe_u32 v8, v0, 2, 2\nv_and_b32 v9, 3, v0")
    a("v_lshrrev_b32 v30, 1, v2\nv_lshlrev_b32 v30, 4, v30\nv_and_b32 v31, 1, v2\nv_lshl_add_u32 v30, v31, 2, v30\nv_add_u32 v30, v30, v8")
    NLK = OPTS.get("nlk", 2); NR = 10 - NLK
    if OPTS.get("rot", 1) == 0: a(f"s_mov_b32 s54, {NLK}")
    else:
        if NR >= 10: a("s_and_b32 s28, s12, 7\ns_lshr_b32 s29, s11, 3\ns_lshl_b32 s29, s29, 1\ns_add_u32 s28, s28, s29\ns_cmp_ge_u32 s28, 10\ns_cselect_b32 s29, 10, 0\ns_sub_u32 s28, s28, s29")
        else: a(f"s_lshr_b32 s28, s11, 3\ns_mul_i32 s28, s28, {OPTS.get('rotk', 2)}\ns_add_u32 s28, s28, s12\ns_and_b32 s28, s28, 7")
        if NR < 8: a(f"s_cmp_ge_u32 s28, {NR}\ns_cselect_b32 s29, {NR}, 0\ns_sub_u32 s28, s28, s29")
        a(f"s_add_u32 s54, s28, {NLK}")
    a("s_mov_b32 s55, 0" if NLK > 0 else "s_mov_b32 s55, s54")
    a("s_cmp_ge_u32 s13, 8\ns_cbranch_scc1 p1_ffn")
    gen_qkv(a)
    if fused:
        a("s_mov_b32 s53, 1\ns_lshl_b32 s66, s12, 7\ns_lshl_b32 s29, s13, 2\ns_add_u32 s66, s66, s29\ns_branch fz_common")
    else: a("s_branch p1_end")
    a.label("p1_ffn")
    gen_ffn(a)
    if fused:
        gen.stamp(a)
        a("s_waitcnt vmcnt(0)\ns_barrier")
        a("s_mov_b32 s53, 0\ns_mov_b32 s66, 0")
        a.label("fz_common")
    a.label("p1_end")
    if fused:
        a(f"s_add_u32 s48, s8, {FLAG_OFF}\ns_addc_u32 s49, s9, 0\ns_and_b32 s49, s49, 0xffff\ns_mov_b32 s50, 8192\ns_mov_b32 s51, 0x20000")
        a("s_cmp_eq_u32 s14, 0\ns_cbranch_scc0 fz_pub")
        a("s_waitcnt vmcnt(0)")
        a(nonce_get_text(52))
        a(f"v_mov_b32 v20, {163840-16}\nv_mov_b32 v21, s52\nds_write_b32 v20, v21")
        a("s_cmp_eq_u32 s53, 0\ns_cbranch_scc0 fz_pub2")
        a("s_lshl_b32 s28, s12, 7\ns_lshl_b32 s29, s13, 2\ns_add_u32 s28, s28, s29\ns_add_u32 s28, s28, 32\nv_mov_b32 v20, s28\ns_mov_b64 exec, 1")
        a("buffer_store_dword v21, v20, s[48:51], 0 offen sc1")
        a("s_mov_b64 exec, -1")
        a.label("fz_pub2")
        a(packflags_check_text())
        a("s_waitcnt lgkmcnt(0)")
        a.label("fz_pub")
        a("s_barrier")
        a(f"v_mov_b32 v20, {163840-16}\nds_read_b32 v21, v20\ns_waitcnt lgkmcnt(0)\nv_readfirstlane_b32 s52, v21")
        from gen_p2 import gen_p2_body
        gen_p2_body(a, 8, 4, 96, True)
    gen.stamp(a); gen.stamp_dump(a, 14)
    if dbg and not fused:
        a("s_memtime s[64:65]\ns_memrealtime s[66:67]\ns_waitcnt vmcnt(0) lgkmcnt(0)\ns_sub_u32 s64, s64, s62")
        a(f"s_add_u32 s68, s8, {96<<20}\ns_addc_u32 s69, s9, 0\ns_and_b32 s69, s69, 0xffff\ns_mov_b32 s70, 0x10000\ns_mov_b32 s71, 0x20000")
        a("s_cmp_eq_u32 s14, 0\ns_cbranch_scc0 p1_done")
        a("v_mov_b32 v2, s64\nv_mov_b32 v3, s98\nv_mov_b32 v4, s66\ns_lshl_b32 s3, s2, 4\nv_mov_b32 v5, s3\nv_cmp_eq_u32 vcc, 0, v0\ns_and_saveexec_b64 s[66:67], vcc\nbuffer_store_dwordx3 v[2:4], v5, s[68:71], 0 offen")
    a.label("p1_done")
    a("s_endpgm")

def common_srds(a):
    a("s_waitcnt lgkmcnt(0)")
    srd(a, 20, 4, 2621440)
    global_prefetch(a)
    if gen.OPTS.get("stamps"): gen.stamp_init(a, 8); gen.rstamp(a, 62)
    gen.stamp(a)

def dbg_srd(a, d=28):
    a(f"s_mov_b32 s{d}, s84\ns_and_b32 s{d+1}, s85, 0xffff\ns_mov_b32 s{d+2}, 256\ns_mov_b32 s{d+3}, 0x20000")
def nonce(a):
    if not gen.FUSED: return
    lab = gen.uniq("nn")
    a(f"s_or_b32 s28, s2, s14\ns_cmp_eq_u32 s28, 0\ns_cbranch_scc0 {lab}")
    a("s_memrealtime s[32:33]"); dbg_srd(a); a("s_waitcnt lgkmcnt(0)\ns_or_b32 s32, s32, 1")
    a("v_mov_b32 v252, s32\nv_mov_b32 v255, 0\ns_mov_b64 exec, 1\nbuffer_store_dword v252, v255, s[28:31], 0 offen sc1\ns_mov_b64 exec, -1")
    a.label(lab)
def nonce_load_text():
    lab = gen.uniq("nl")
    return (f"s_cmp_eq_u32 s14, 0\ns_cbranch_scc0 {lab}\ns_mov_b32 s28, s84\ns_and_b32 s29, s85, 0xffff\ns_mov_b32 s30, 256\ns_mov_b32 s31, 0x20000\n"
            f"v_mov_b32 v255, 0\nbuffer_load_dword v252, v255, s[28:31], 0 offen sc1\n{lab}:")
def packflags_addr():
    return (f"s_add_u32 s28, s8, {FLAG_OFF}\ns_addc_u32 s29, s9, 0\ns_and_b32 s29, s29, 0xffff\ns_mov_b32 s30, 8192\ns_mov_b32 s31, 0x20000\n"
            "v_lshlrev_b32 v255, 2, v0\nv_add_u32 v255, 4096, v255\nbuffer_load_dword v253, v255, s[28:31], 0 offen sc1\n"
            "v_and_b32 v249, 3, v0\nv_lshlrev_b32 v249, 2, v249\nv_add_u32 v249, 4352, v249\nbuffer_load_dword v254, v249, s[28:31], 0 offen sc1")
def packflags_load_text():
    lab = gen.uniq("pl")
    return f"s_cmp_eq_u32 s14, 0\ns_cbranch_scc0 {lab}\n" + packflags_addr() + f"\n{lab}:"
def packflags_check_text():
    l1, l2 = gen.uniq("pc"), gen.uniq("pc")
    return (f"s_mov_b32 s33, 0\n{l1}:\nv_cmp_ne_u32 vcc, s52, v253\nv_cmp_ne_u32 s[54:55], s52, v254\ns_nop 3\ns_or_b64 vcc, vcc, s[54:55]\ns_cmp_eq_u64 vcc, 0\ns_cbranch_scc1 {l2}\n"
            "s_sleep 4\n" + packflags_addr() + f"\ns_waitcnt vmcnt(0)\ns_add_u32 s33, s33, 1\ns_cmp_lt_u32 s33, 0x20000\ns_cbranch_scc1 {l1}\n{l2}:")
def nonce_get_text(sdst):
    l1, l2 = gen.uniq("ng"), gen.uniq("ng")
    return (f"s_mov_b32 s33, 0\n{l1}:\nv_readfirstlane_b32 s{sdst}, v252\ns_nop 3\ns_cmp_lg_u32 s{sdst}, 0\ns_cbranch_scc1 {l2}\n"
            f"s_mov_b32 s28, s84\ns_and_b32 s29, s85, 0xffff\ns_mov_b32 s30, 256\ns_mov_b32 s31, 0x20000\ns_sleep 8\nv_mov_b32 v255, 0\nbuffer_load_dword v252, v255, s[28:31], 0 offen sc1\ns_waitcnt vmcnt(0)\n"
            f"s_add_u32 s33, s33, 1\ns_cmp_lt_u32 s33, 0x20000\ns_cbranch_scc1 {l1}\n{l2}:")

def global_prefetch(a):
    if not gen.OPTS.get("gpf"): return
    a("v_lshlrev_b32 v228, 4, v0")
    a("s_mul_i32 s28, s2, 10240\ns_mul_i32 s29, s14, 1280\ns_add_u32 s28, s28, s29")
    a("buffer_load_dwordx4 v[232:235], v228, s[20:23], s28 offen")
    a("s_mov_b64 exec, 0xffff\nbuffer_load_dwordx4 v[232:235], v228, s[20:23], s28 offen offset:1024\ns_mov_b64 exec, -1")
    srd(a, 28, 6, 640*1920*2)
    a("s_mul_i32 s32, s2, 9600\ns_mul_i32 s33, s14, 1200\ns_add_u32 s32, s32, s33\ns_and_b32 s32, s32, 0xffffff80")
    a("buffer_load_dwordx4 v[232:235], v228, s[28:31], s32 offen")
    a("s_mov_b64 exec, 0xffff\nbuffer_load_dwordx4 v[232:235], v228, s[28:31], s32 offen offset:1024\ns_mov_b64 exec, -1")
    srd(a, 28, 56, 640*1536*2)
    a("s_mul_i32 s32, s2, 7680\ns_mul_i32 s33, s14, 960\ns_add_u32 s32, s32, s33\ns_and_b32 s32, s32, 0xffffff80")
    a("buffer_load_dwordx4 v[232:235], v228, s[28:31], s32 offen")

def touch0_x(a, tag):
    a(f"s_sub_u32 s28, s14, 3\ns_cmp_lt_u32 s28, 2\ns_cbranch_scc0 {tag}_n0x")
    a("v_lshrrev_b32 v228, 1, v0\nv_and_b32 v229, 1, v0\nv_and_b32 v230, 31, v0\ns_cmp_eq_u32 s28, 0\ns_cselect_b64 vcc, -1, 0")
    a("v_cndmask_b32 v228, v230, v228, vcc\nv_mov_b32 v230, 2\nv_cndmask_b32 v229, v230, v229, vcc")
    a("s_lshr_b32 s28, s11, 3\ns_lshl_b32 s28, s28, 5\ns_lshl_b32 s29, s12, 7\ns_add_u32 s28, s28, s29\nv_add_u32 v228, s28, v228\nv_mul_u32_u24 v228, 1280, v228\nv_lshl_add_u32 v228, v229, 7, v228")
    a("buffer_load_dword v229, v228, s[20:23], 0 offen")
    a.label(f"{tag}_n0x")

def touch_x(a, tag):
    a(f"s_cmp_lt_u32 s14, 4\ns_cbranch_scc0 {tag}_ntx")
    a("s_lshr_b32 s28, s11, 3\ns_lshl_b32 s28, s28, 5\ns_lshl_b32 s29, s14, 3\ns_add_u32 s28, s28, s29\ns_lshl_b32 s29, s12, 7\ns_add_u32 s28, s28, s29")
    a("v_add_u32 v228, s28, v3\nv_mul_u32_u24 v228, 1280, v228\nv_and_b32 v229, 7, v0\nv_lshl_add_u32 v228, v229, 7, v228")
    a("buffer_load_dword v229, v228, s[20:23], 0 offen offset:256")
    a.label(f"{tag}_ntx")

def distribute(items, nhalves, first, weights=None):
    out = [[] for _ in range(nhalves)]
    k = len(items); span = nhalves - first
    for t, x in enumerate(items): out[first + (t*span)//max(k, 1)].append(x)
    return out

def gen_qkv(a):
    LAZY = gen.OPTS.get('lazy', 0)
    QX = 18432; QW0 = 3*QX; QP = 30720; QWS = 10240
    def dma_list(stg):
        sl = stg % 3
        d5 = {0: "s39", 1: "s52", 2: "s53"}[sl]
        return [(f"s_add_u32 m0, s34, {sl*QX}", "buffer_load_dwordx4 v10, s[20:23], s48 offen " + gen.OPTS.get("xf","") + " lds"),
                (f"s_add_u32 m0, s35, {sl*QX}", "buffer_load_dwordx4 v11, s[20:23], s48 offen " + gen.OPTS.get("xf","") + " lds"),
                (f"s_add_u32 m0, s36, {sl*QWS}", "buffer_load_dwordx4 v12, s[24:27], s49 offen " + gen.OPTS.get("wf","") + " lds"),
                (f"s_add_u32 m0, s37, {sl*QWS}", "buffer_load_dwordx4 v13, s[24:27], s49 offen " + gen.OPTS.get("wf","") + " lds"),
                (f"s_add_u32 m0, s38, {sl*QWS}", "buffer_load_dwordx4 v14, s[24:27], s49 offen " + gen.OPTS.get("wf","") + " lds"),
                (f"s_mov_b32 m0, {d5}", "s_mov_b64 exec, s[46:47]\nbuffer_load_dwordx4 v15, s[40:43], s45 offen " + gen.OPTS.get("wf","") + " lds\ns_mov_b64 exec, -1\n" +
                 adv(stg) + f"\ns_lshl_b32 s48, s55, 7\ns_mul_i32 s49, s55, {64*3840}\ns_mul_i32 s45, s55, s44")]
    def one_dma(d): a(d[0]); a("s_nop 0"); a(d[1])
    def wvoff(i):
        qs = [min(w + 8*(i-2), 29) for w in range(8)]
        a(bfe(29, [q//10 for q in qs])); a(bfe(30, [q % 10 for q in qs]))
        a("s_lshl_b32 s31, s30, 6\nv_add_u32 v32, s31, v0")
        a("v_mul_u32_u24 v33, 6554, v32\nv_lshrrev_b32 v33, 16, v33\nv_mul_u32_u24 v34, 10, v33\nv_sub_u32 v34, v32, v34")
        kmap(a, 35, 33, 32)
        a("v_mul_u32_u24 v35, 3840, v35\nv_lshl_add_u32 v35, v34, 4, v35")
        a(f"s_mul_i32 s31, s29, 1280\ns_add_u32 s31, s31, s18\nv_add_u32 v{10+i}, s31, v35")
        a(f"s_mul_i32 s31, s29, {QP}\ns_lshl_b32 s33, s30, 10\ns_add_u32 s31, s31, s33\ns_add_u32 s{34+i}, s31, {QW0}")
    a("s_mul_i32 s18, s13, 160")
    wvoff(2)
    common_srds(a)
    a(f"s_lshl_b32 s48, s55, 7\ns_mul_i32 s49, s55, {64*3840}")
    D0 = dma_list(0); D1 = dma_list(1)
    srd(a, 24, 6, 640*1920*2)
    if gen.OPTS.get("touch0", 1):
        touch0_x(a, "q")
        a("s_cmp_lt_u32 s14, 3\ns_cbranch_scc0 q_n0w")
        a("s_and_b32 s29, s12, 7\ns_mul_i32 s29, s29, 24\nv_lshrrev_b32 v228, 1, v0\nv_add_u32 v228, s29, v228\nv_mul_u32_u24 v228, 3840, v228\nv_and_b32 v229, 1, v0\nv_lshl_add_u32 v228, v229, 7, v228")
        a("s_mul_i32 s28, s14, 1280\ns_and_b32 s29, s18, 0xffffff80\ns_add_u32 s28, s28, s29")
        a("buffer_load_dword v229, v228, s[24:27], s28 offen")
        a.label("q_n0w")
    one_dma(D0[0]); one_dma(D0[1])
    one_dma(D0[2])
    wvoff(3); one_dma(D0[3])
    wvoff(4); one_dma(D0[4])
    wvoff(5)
    a("s_sub_u32 s28, s14, 6\ns_lshl_b32 s29, s12, 7\ns_sub_u32 s29, s29, 16\ns_add_u32 s29, s29, s28")
    a("v_lshlrev_b32 v32, 1, v3\nv_add_u32 v32, s29, v32\nv_max_i32 v32, 0, v32\nv_mul_u32_u24 v32, 1280, v32\nv_add_u32 v32, v32, v4")
    a("s_lshl_b32 s29, s28, 10\ns_add_u32 s29, s29, 16384")
    a(f"s_cmp_ge_u32 s14, 6\ns_cselect_b32 s39, s29, s39\ns_cselect_b64 vcc, -1, 0\ns_mov_b32 s33, {QWS}\ns_cselect_b32 s33, {QX}, s33")
    a("v_cndmask_b32 v15, v15, v32, vcc")
    a("s_add_u32 s52, s39, s33\ns_add_u32 s53, s52, s33")
    a(f"s_cmp_ge_u32 s14, 6\ns_cselect_b32 s40, s20, s24\ns_cselect_b32 s41, s21, s25\ns_cselect_b32 s42, s22, s26\ns_mov_b32 s43, 0x20000\ns_mov_b32 s44, {64*3840}\ns_cselect_b32 s44, 128, s44")
    a("s_cmp_eq_u32 s14, 6\ns_cselect_b32 s46, 0xffffff00, -1\ns_mov_b32 s47, -1\ns_mul_i32 s45, s55, s44")
    one_dma(D0[5])
    VX0, VX1, VH0, VH1, VS0, VS1, VW = 16, 17, 18, 19, 20, 21, 22
    PRE = []
    PRE.append(f"s_lshl_b32 s28, s16, 13\nv_add_u32 v{VX0}, s28, v6\nv_add_u32 v{VX1}, s28, v7\nv_add_u32 v{VH0}, 16384, v6\nv_add_u32 v{VH1}, 16384, v7")
    PRE.append(f"s_lshl_b32 s29, s15, 11\nv_add_u32 v{VS0}, s29, v{VX0}\nv_add_u32 v{VS1}, s29, v{VX1}")
    PRE.append("v_mul_u32_u24 v32, 160, v30\nv_mul_u32_u24 v33, 40, v9\nv_add_u32 v32, v32, v33")
    STAT = 147456; CS = STAT + 1280
    KB = 23040; VB = 2*KB; DUM = 3*KB
    E = dict(VD=188, VDH=192, VK=194, VV=197, VQ=200, BI=201, STR=213, STH=214, CSR=215, STW=219, CSW=220, L16=222)
    t0, t1, t2, t3 = 224, 225, 226, 227
    def feat(w, p):
        aa, b = w >> 2, w & 3
        return 4*b + ((p + 2*aa) & 3) if b < 3 else 12 + ((p + 2*aa) % 3)
    SU = [f"v_lshlrev_b32 v{t0}, 3, v0", f"v_lshlrev_b32 v{t1}, 4, v2", f"v_lshlrev_b32 v{E['L16']}, 4, v0", f"s_mul_i32 s17, s16, {4*2560}"]
    for p in range(4):
        fs = [min(feat(w, p), 14) for w in range(8)]
        PRE.append(bfe(64+p, fs) + "\n" + bfe(72+p, [f//5 for f in fs]) + "\n" + bfe(76+p, [f % 5 for f in fs]) + "\n" +
                   f"s_mul_i32 s31, s{72+p}, {QP}\ns_lshl_b32 s33, s{76+p}, 3\ns_add_u32 s31, s31, s33\ns_add_u32 s31, s31, {QW0}\nv_add_u32 v{VW+p}, s31, v32")
        it = f"s_mul_i32 s31, s{72+p}, {KB}\ns_lshl_b32 s33, s{76+p}, 9\ns_add_u32 s31, s31, s33\ns_add_u32 s33, s31, s17\nv_add_u32 v{E['VD']+p}, s33, v{t0}"
        if p < 2: it += f"\ns_add_u32 s33, s31, {8*2560}\ns_cmp_lt_u32 s{64+p}, 5\ns_cselect_b32 s33, {DUM}, s33\nv_add_u32 v{E['VDH']+p}, s33, v{t0}"
        it += f"\ns_lshl_b32 s33, s{64+p}, 6\ns_add_u32 s33, s33, {CS}\nv_add_u32 v{E['CSR']+p}, s33, v{t1}"
        if p < 2: it += f"\nv_mov_b32 v{E['CSW']+p}, v{E['CSR']+p}"
        SU.append(it)
    SU.append(f"v_lshlrev_b32 v{t2}, 3, v1\ns_lshl_b32 s28, s14, 7\ns_add_u32 s28, s28, {STAT}\nv_add_u32 v{E['STW']}, s28, v{t2}\n"
              f"s_lshl_b32 s28, s16, 9\ns_add_u32 s28, s28, {STAT}\nv_add_u32 v{E['STR']}, s28, v{t2}\nv_add_u32 v{E['STH']}, {STAT+8*128}, v{t2}")
    SU.append(f"s_mul_i32 s68, s14, 2560\ns_lshl_b32 s30, s16, 6\ns_add_u32 s30, s30, {8*2560+8*8}\ns_sub_u32 s30, s30, s68\n"
              f"s_cmp_eq_u32 s15, 0\ns_cselect_b32 s69, s30, {(-2560+128) & 0xffffffff:#x}")
    SU.append(f"v_add_u32 v{E['VQ']}, s68, v{t0}\nv_mov_b32 v{t2}, s69")
    SU.append(f"v_add_u32 v{E['VK']+2}, {KB}, v{E['VQ']}")
    SU.append(f"v_cmp_gt_u32 s[28:29], 4, v1\nv_cmp_gt_u32 s[30:31], 8, v1\nv_add_u32 v{E['VK']+1}, {-32 & 0xffffffff:#x}, v{E['VK']+2}\nv_add_u32 v{E['VK']}, {-64 & 0xffffffff:#x}, v{E['VK']+2}\n"
              f"v_cndmask_b32 v{t3}, 0, v{t2}, s[28:29]\nv_add_u32 v{E['VK']+1}, v{E['VK']+1}, v{t3}\nv_cndmask_b32 v{t3}, 0, v{t2}, s[30:31]\nv_add_u32 v{E['VK']}, v{E['VK']}, v{t3}")
    SU.append(f"v_lshl_add_u32 v{t3}, v9, 2, v8\nv_lshl_add_u32 v{t3}, v2, 4, v{t3}\nv_lshlrev_b32 v{t3}, 3, v{t3}\ns_add_u32 s28, s68, {VB}\nv_add_u32 v{E['VV']+2}, s28, v{t3}")
    SU.append(f"v_cmp_gt_u32 s[28:29], 1, v9\nv_cmp_gt_u32 s[30:31], 2, v9\nv_add_u32 v{E['VV']+1}, {-32 & 0xffffffff:#x}, v{E['VV']+2}\nv_add_u32 v{E['VV']}, {-64 & 0xffffffff:#x}, v{E['VV']+2}\n"
              f"v_cndmask_b32 v{t3}, 0, v{t2}, s[28:29]\nv_add_u32 v{E['VV']+1}, v{E['VV']+1}, v{t3}\nv_cndmask_b32 v{t3}, 0, v{t2}, s[30:31]\nv_add_u32 v{E['VV']}, v{E['VV']}, v{t3}")
    NEG = f2u(-1e30); BI = E['BI']
    SU.append(f"v_and_b32 v{t1}, 3, v1\nv_mov_b32 v{t3}, {NEG:#x}\n" +
              "\n".join(f"v_cmp_gt_u32 s[{28+2*i}:{29+2*i}], {i}, v{t1}" for i in range(1, 3)) + f"\nv_cmp_gt_u32 vcc, 3, v{t1}\n" +
              f"v_mov_b32 v{BI}, v{t3}\nv_mov_b32 v{BI+8}, 0\n" +
              f"v_cndmask_b32 v{BI+1}, v{t3}, 0, s[30:31]\nv_cndmask_b32 v{BI+9}, 0, v{t3}, s[30:31]\n" +
              f"v_cndmask_b32 v{BI+2}, v{t3}, 0, s[32:33]\nv_cndmask_b32 v{BI+10}, 0, v{t3}, s[32:33]\n" +
              f"v_cndmask_b32 v{BI+3}, v{t3}, 0, vcc\nv_cndmask_b32 v{BI+11}, 0, v{t3}, vcc\n" +
              "\n".join(f"v_mov_b32 v{BI+4+i}, 0" for i in range(4)))
    SU.append("s_or_b32 s28, s12, s15\ns_cmp_eq_u32 s28, 0\ns_cbranch_scc0 q_nostart\ns_mov_b32 exec_lo, 0x00ff00ff\ns_mov_b32 exec_hi, 0x00ff00ff\n" +
              "\n".join(f"v_mov_b32 v{BI+i}, v{t3}" for i in range(4)) + "\ns_mov_b32 exec_lo, 0x000f000f\ns_mov_b32 exec_hi, 0x000f000f\n" +
              "\n".join(f"v_mov_b32 v{BI+4+i}, v{t3}" for i in range(4)) + "\ns_mov_b64 exec, -1\nq_nostart:")
    SU.append("s_lshl_b32 s28, s12, 3\ns_add_u32 s28, s28, s14\ns_mul_i32 s28, s28, 69632\ns_lshr_b32 s29, s13, 1\ns_mul_i32 s29, s29, 5\ns_add_u32 s29, s29, 48\ns_lshl_b32 s29, s29, 10\ns_add_u32 s28, s28, s29\n"
              "s_and_b32 s29, s13, 1\ns_lshl_b32 s70, s29, 11\ns_add_u32 s70, s70, s28\ns_lshl_b32 s71, s29, 3\ns_add_u32 s71, s71, s28\ns_add_u32 s71, s71, 4096")
    SU.append(f"s_mov_b32 s80, s8\ns_and_b32 s81, s9, 0xffff\ns_mov_b32 s82, {A2_SIZE}\ns_mov_b32 s83, 0x20000")
    a("s_cmp_eq_u32 s14, 6\ns_cbranch_scc0 q_noones")
    a(f"v_mov_b32 v36, {ONES:#x}\nv_mov_b32 v37, v36\nv_mov_b32 v38, v36\nv_mov_b32 v39, v36\nv_lshlrev_b32 v40, 4, v0\ns_mov_b64 exec, 0xff")
    for s in range(3): a(f"ds_write_b128 v40, v[36:39] offset:{s*QX+16384}")
    a("s_mov_b64 exec, -1")
    a.label("q_noones")
    NSPR = 0
    allp = PRE + SU
    nl = [x.count("\n")+1 for x in allp]; tot = sum(nl); acc = 0; k = 0
    for x, n_ in zip(allp, nl):
        while not LAZY and k < 6 and acc >= (k*tot)//6: one_dma(D1[k]); k += 1
        a(x); acc += n_
    while not LAZY and k < 6: one_dma(D1[k]); k += 1
    nonce(a)
    if gen.OPTS.get("touch"): touch_x(a, "q")
    if not not gen.OPTS.get("touch"):
        a("s_cmp_ge_u32 s14, 2\ns_cbranch_scc0 q_ntw")
        a("s_sub_u32 s28, s14, 2\ns_lshr_b32 s29, s28, 1\ns_mul_i32 s29, s29, 1280\ns_and_b32 s28, s28, 1\ns_lshl_b32 s28, s28, 7\ns_add_u32 s28, s28, s29\ns_and_b32 s29, s18, 0xffffff80\ns_add_u32 s28, s28, s29")
        a("s_and_b32 s29, s12, 7\ns_lshl_b32 s29, s29, 6\ns_add_u32 s29, s29, 128\nv_add_u32 v228, s29, v0\nv_mul_u32_u24 v228, 3840, v228")
        a("buffer_load_dword v229, v228, s[24:27], s28 offen")
        a.label("q_ntw")
    SUH = [[] for _ in range(2*NST)]
    rest = SU[len(SU)-NSPR:]
    for t_, x in enumerate(rest): SUH[1 + (t_*16)//max(len(rest), 1)].append(x)
    VSUM, VSQ, VT = 26, 27, 30
    ACC = 36; HACC = 100; GR = 232; SM = 236; OA = 240
    a(f"v_mov_b32 v{VSUM}, 0\nv_mov_b32 v{VSQ}, 0")
    SET = [108, 148]
    def path(tag, NP, isB):
        if isB:
            for e in range(4): a(f"v_mov_b32 v{OA+e}, {ONES:#x}")
        def read_list(st, stg, ks):
            B = SET[st]; R = []; sl = stg % 3
            vx, vh, vs = (VX0, VH0, VS0) if ks == 0 else (VX1, VH1, VS1)
            tr = lambda p: [f"ds_read_b64_tr_b16 v[{B+24+4*p+2*h}:{B+25+4*p+2*h}], v{VW+p} offset:{sl*QWS+(32*ks+8*h)*160}" for h in range(2)]
            R += tr(0); R.append(f"ds_read_b128 v[{B}:{B+3}], v{vx} offset:{sl*QX}")
            R += tr(1); R.append(f"ds_read_b128 v[{B+4}:{B+7}], v{vx} offset:{sl*QX+2048}")
            R += tr(2); R.append(f"ds_read_b128 v[{B+8}:{B+11}], v{vx} offset:{sl*QX+4096}")
            if NP == 4: R += tr(3)
            R.append(f"ds_read_b128 v[{B+12}:{B+15}], v{vx} offset:{sl*QX+6144}")
            R.append(f"ds_read_b128 v[{B+16}:{B+19}], v{vh} offset:{sl*QX}")
            R.append(f"ds_read_b128 v[{B+20}:{B+23}], v{vs} offset:{sl*QX}")
            return R
        def mfma_list(st, first):
            B = SET[st]; M = []
            c = lambda r: "0" if first else f"v[{r}:{r+3}]"
            for i in range(4):
                for p in range(NP):
                    r = ACC+16*i+4*p
                    M.append(f"v_mfma_f32_16x16x32_bf16 v[{r}:{r+3}], v[{B+24+4*p}:{B+27+4*p}], v[{B+4*i}:{B+4*i+3}], {c(r)}")
            for p in range(2):
                r = HACC+4*p
                M.append(f"v_mfma_f32_16x16x32_bf16 v[{r}:{r+3}], v[{B+24+4*p}:{B+27+4*p}], v[{B+16}:{B+19}], {c(r)}")
            if isB:
                M.insert(4, f"v_mfma_f32_16x16x32_bf16 v[{GR}:{GR+3}], v[{B+16}:{B+19}], v[{B+16}:{B+19}], {c(GR)}")
                M.insert(9, f"v_mfma_f32_16x16x32_bf16 v[{SM}:{SM+3}], v[{OA}:{OA+3}], v[{B+16}:{B+19}], {c(SM)}")
            return M
        def halo_chain():
            return [f"v_and_b32 v32, 3, v1", "v_cmp_eq_u32 vcc, 1, v32\nv_cmp_eq_u32 s[28:29], 2, v32\nv_cmp_eq_u32 s[30:31], 3, v32",
                    f"v_cndmask_b32 v29, v{GR}, v{GR+1}, vcc", f"v_cndmask_b32 v29, v29, v{GR+2}, s[28:29]", f"v_cndmask_b32 v29, v29, v{GR+3}, s[30:31]",
                    f"v_mov_b32 v28, v{SM}"] + finish_stats_list(28, 29, 34)
        a(f"s_waitcnt vmcnt({0 if LAZY else 6}) lgkmcnt(0)\ns_barrier")
        gen.stamp(a); gen.rstamp(a, 60)
        L = Asm()
        emit(L, read_list(0, 0, 0))
        for s in range(NST):
            last = s == NST-1
            Da = (dma_list(2) if s == 0 else dma_list(s+2)[3:]) if s+2 < NST else []
            Db = dma_list(s+3)[:3] if s+3 < NST else []
            if LAZY and s == 0: Da = dma_list(1); Db = dma_list(2) + Db
            emit(L, sched(mfma_list(0, s == 0), R=read_list(1, s, 1), V=stats_valu(SET[0]+20, VSUM, VSQ, VT), D=Da, lead=0, X=SUH[2*s]))
            if not last: L(f"s_waitcnt vmcnt({0 if (LAZY and s == 0) else 6 if s < NST-2 else 0})\ns_barrier")
            if gen.OPTS.get("stamps") and not gen.OPTS.get("nostage"):
                L("s_waitcnt lgkmcnt(0)"); L("; STAMP")
            V = stats_valu(SET[1]+20, VSUM, VSQ, VT)
            M = mfma_list(1, False)
            if last:
                V = V + zip2(reduce_g_list(VSUM, VT), reduce_g_list(VSQ, VT+1)) + finish_stats_list(VSUM, VSQ, VT)
                if isB:
                    M = [m for m in M if f"v[{GR}:" in m.split(",")[0] or f"v[{SM}:" in m.split(",")[0]] + [m for m in M if not (f"v[{GR}:" in m.split(",")[0] or f"v[{SM}:" in m.split(",")[0])]
                    V = V + halo_chain()
            emit(L, sched(M, R=read_list(0, s+1, 0) if not last else [], V=V, D=Db, lead=1, X=SUH[2*s+1]))
        lines, q = auto_lgkm(L.lines)
        for l in lines:
            if l == "; STAMP": gen.stamp(a)
            else: a(l)
        gen.stamp(a); gen.rstamp(a, 61)
        if gen.FUSED: a(nonce_load_text()); a(packflags_load_text())
        a(f"ds_write_b64 v{E['STW']}, v[{VSUM}:{VSQ}]")
        a("s_mov_b32 exec_lo, 0x00010001\ns_mov_b32 exec_hi, 0x00010001")
        for p in range(2): a(f"ds_write_b128 v{E['CSW']+p}, v[{HACC+4*p}:{HACC+4*p+3}]")
        a("s_mov_b64 exec, -1")
        if isB:
            a("s_mov_b32 exec_lo, 0x00f0000f\ns_mov_b32 exec_hi, 0xf0000f00")
            a(f"ds_write_b64 v{E['STH']}, v[28:29]")
            a("s_mov_b64 exec, -1")
        a("s_waitcnt lgkmcnt(0)\ns_barrier")
        gen.stamp(a)
        ST = 108; CSR = 120
        for i in range(4): a(f"ds_read_b64 v[{ST+2*i}:{ST+2*i+1}], v{E['STR']} offset:{128*i}")
        for p in range(NP): a(f"ds_read_b128 v[{CSR+4*p}:{CSR+4*p+3}], v{E['CSR']+p}")
        a(f"ds_read_b64 v[{ST+8}:{ST+9}], v{E['STH']}")
        a("s_waitcnt lgkmcnt(0)")
        tiles = [(ACC+16*i+4*p, ST+2*i, CSR+4*p, E['VD']+p, i*2560) for i in range(4) for p in range(NP)]
        tiles += [(HACC+4*p, ST+8, CSR+4*p, E['VDH']+p, 0) for p in range(2)]
        for n, (r, st, cs, vd, off) in enumerate(tiles):
            T0 = 140 + 8*(n & 1)
            for e in (0, 2): a(f"v_pk_mul_f32 v[{T0+e}:{T0+e+1}], v[{cs+e}:{cs+e+1}], v[{st}:{st+1}] op_sel:[0,1] op_sel_hi:[1,1]")
            for e in (0, 2): a(f"v_pk_fma_f32 v[{T0+e}:{T0+e+1}], v[{r+e}:{r+e+1}], v[{st}:{st+1}], v[{T0+e}:{T0+e+1}] op_sel_hi:[1,0,1] neg_lo:[0,0,1] neg_hi:[0,0,1]")
            a(f"v_cvt_pk_bf16_f32 v{T0+4}, v{T0}, v{T0+1}\nv_cvt_pk_bf16_f32 v{T0+5}, v{T0+2}, v{T0+3}")
            a(f"ds_write_b64 v{vd}, v[{T0+4}:{T0+5}] offset:{off}")
        a("s_waitcnt lgkmcnt(0)\ns_barrier")
    a("s_cmp_eq_u32 s15, 3\ns_cbranch_scc1 q_pathB")
    path("A", 4, False)
    a("s_branch q_attn")
    a.label("q_pathB")
    path("B", 3, True)
    a.label("q_attn")
    gen.stamp(a)
    QR = 36; KR = 46; VR = 76
    for t in range(5): a(f"ds_read_b64 v[{QR+2*t}:{QR+2*t+1}], v{E['VQ']} offset:{t*512}")
    for t in range(5):
        for kb in range(3): a(f"ds_read_b64 v[{KR+10*kb+2*t}:{KR+10*kb+2*t+1}], v{E['VK']+kb} offset:{t*512}")
    S = 128; O = 140
    c = f2u(LOG2E * 20**-0.5)
    a(f"s_mov_b32 s30, {c:#x}")
    for t in range(5):
        a(f"s_waitcnt lgkmcnt({min(15, 3*(4-t))})")
        for kb in range(3):
            cc = "0" if t == 0 else f"v[{S+4*kb}:{S+4*kb+3}]"
            a(f"v_mfma_f32_4x4x4_16b_bf16 v[{S+4*kb}:{S+4*kb+3}], v[{KR+10*kb+2*t}:{KR+10*kb+2*t+1}], v[{QR+2*t}:{QR+2*t+1}], {cc}")
    for kb in range(3):
        for t in range(5): a(f"ds_read_b64_tr_b16 v[{VR+10*kb+2*t}:{VR+10*kb+2*t+1}], v{E['VV']+kb} offset:{t*512}")
    for e in range(12): a(f"v_fma_f32 v{S+e}, v{S+e}, s30, v{E['BI']+e}")
    a(f"v_max3_f32 v34, v{S}, v{S+1}, v{S+2}\nv_max3_f32 v35, v{S+3}, v{S+4}, v{S+5}\nv_max3_f32 v34, v34, v{S+6}, v{S+7}\nv_max3_f32 v35, v35, v{S+8}, v{S+9}\nv_max3_f32 v34, v34, v{S+10}, v{S+11}\nv_max_f32 v34, v34, v35")
    for e in range(12): a(f"v_sub_f32 v{S+e}, v{S+e}, v34")
    for e in range(12): a(f"v_exp_f32 v{S+e}, v{S+e}")
    a(f"v_add_f32 v34, v{S}, v{S+1}\nv_add_f32 v35, v{S+2}, v{S+3}")
    for e in range(4, 12, 2): a(f"v_add_f32 v34, v34, v{S+e}\nv_add_f32 v35, v35, v{S+e+1}")
    a("v_add_f32 v34, v34, v35\nv_rcp_f32 v34, v34")
    for e in range(12): a(f"v_mul_f32 v{S+e}, v{S+e}, v34")
    P = 116
    for kb in range(3):
        a(f"v_cvt_pk_bf16_f32 v{P+2*kb}, v{S+4*kb}, v{S+4*kb+1}\nv_cvt_pk_bf16_f32 v{P+2*kb+1}, v{S+4*kb+2}, v{S+4*kb+3}")
    a("s_waitcnt lgkmcnt(0)")
    for kb in range(3):
        for t in range(5):
            cc = "0" if kb == 0 else f"v[{O+4*t}:{O+4*t+3}]"
            a(f"v_mfma_f32_4x4x4_16b_bf16 v[{O+4*t}:{O+4*t+3}], v[{VR+10*kb+2*t}:{VR+10*kb+2*t+1}], v[{P+2*kb}:{P+2*kb+1}], {cc}")
    for i in range(10): a(f"v_cvt_pk_bf16_f32 v{36+i}, v{O+2*i}, v{O+2*i+1}")
    fl = gen.OPTS.get("stf", "")
    st = (f"buffer_store_dwordx4 v[36:39], v{E['L16']}, s[80:83], s70 offen {fl}\n"
          f"buffer_store_dwordx4 v[40:43], v{E['L16']}, s[80:83], s70 offen offset:1024 {fl}\n"
          f"buffer_store_dwordx2 v[44:45], v{E['L16']}, s[80:83], s71 offen {fl}")
    if gen.FUSED: gen.DEFERRED_O = st.replace(f"v{E['L16']},", "v2,")
    else: a(st)

def gen_ffn(a):
    LAZY = gen.OPTS.get('lazy', 0)
    FX = 16384; FW0 = 3*FX; FWS = 24576
    a("s_sub_u32 s13, s13, 8")
    def dma_list(stg):
        sl = stg % 3
        return [(f"s_add_u32 m0, s34, {sl*FX}", "buffer_load_dwordx4 v10, s[20:23], s48 offen " + gen.OPTS.get("xf","") + " lds"),
                (f"s_add_u32 m0, s35, {sl*FX}", "buffer_load_dwordx4 v11, s[20:23], s48 offen " + gen.OPTS.get("xf","") + " lds"),
                (f"s_add_u32 m0, s36, {sl*FWS}", "buffer_load_dwordx4 v12, s[24:27], s49 offen " + gen.OPTS.get("wf","") + " lds"),
                (f"s_add_u32 m0, s37, {sl*FWS}", "buffer_load_dwordx4 v13, s[24:27], s49 offen " + gen.OPTS.get("wf","") + " lds"),
                (f"s_add_u32 m0, s38, {sl*FWS}", "buffer_load_dwordx4 v14, s[24:27], s49 offen " + gen.OPTS.get("wf","") + " lds\n" + adv(stg) + f"\ns_lshl_b32 s48, s55, 7\ns_mul_i32 s49, s55, {64*3072}")]
    def one_dma(d): a(d[0]); a("s_nop 0"); a(d[1])
    def wvoff(i):
        a(f"s_add_u32 s28, s14, {8*i}\ns_lshl_b32 s31, s28, 6\nv_add_u32 v32, s31, v0")
        a("v_mul_u32_u24 v33, 2731, v32\nv_lshrrev_b32 v33, 16, v33\nv_mul_u32_u24 v34, 24, v33\nv_sub_u32 v34, v32, v34")
        a("v_bfe_u32 v35, v33, 1, 2\nv_lshlrev_b32 v35, 1, v35\nv_xor_b32 v34, v34, v35")
        kmap(a, 35, 33, 32)
        a("v_mul_u32_u24 v35, 3072, v35\nv_lshl_add_u32 v35, v34, 4, v35")
        a(f"s_mul_i32 s33, s13, 384\nv_add_u32 v{12+i}, s33, v35")
        a(f"s_lshl_b32 s33, s28, 10\ns_add_u32 s{36+i}, s33, {FW0}")
    wvoff(0)
    common_srds(a)
    a(f"s_lshl_b32 s48, s55, 7\ns_mul_i32 s49, s55, {64*3072}")
    D0 = dma_list(0); D1 = dma_list(1)
    srd(a, 24, 56, 640*1536*2)
    if gen.OPTS.get("touch0", 1):
        touch0_x(a, "f")
        a("s_cmp_lt_u32 s14, 3\ns_cbranch_scc0 f_n0w")
        a("s_and_b32 s29, s12, 7\ns_mul_i32 s29, s29, 24\nv_and_b32 v228, 31, v0\nv_add_u32 v228, s29, v228\nv_mul_u32_u24 v228, 3072, v228")
        a("s_lshl_b32 s28, s14, 7\ns_mul_i32 s29, s13, 384\ns_add_u32 s28, s28, s29")
        a("buffer_load_dword v229, v228, s[24:27], s28 offen")
        a.label("f_n0w")
    one_dma(D0[0]); one_dma(D0[1])
    one_dma(D0[2]); wvoff(1); one_dma(D0[3]); wvoff(2); one_dma(D0[4])
    VX = 16; VW = 20
    PRE = []
    for i in range(2):
        PRE.append(f"s_xor_b32 s28, s16, {i}\ns_lshl_b32 s29, s15, 1\ns_add_u32 s28, s28, s29\ns_mov_b32 s{70+i}, s28\ns_lshl_b32 s28, s28, 11\n"
                   f"v_add_u32 v{VX+2*i}, s28, v6\nv_add_u32 v{VX+2*i+1}, s28, v7")
    PRE.append(f"v_mul_u32_u24 v32, 384, v30\nv_and_b32 v33, 1, v9\nv_lshl_add_u32 v32, v33, 3, v32\nv_add_u32 v32, {FW0}, v32\n"
               "v_bfe_u32 v33, v30, 1, 2\nv_lshlrev_b32 v33, 1, v33\nv_lshrrev_b32 v34, 1, v9")
    for p in range(6):
        fts = [6*(w >> 2) + (p + 2*(w & 3)) % 6 for w in range(8)]
        PRE.append(bfe(72+p, fts) + f"\ns_lshl_b32 s28, s{72+p}, 1\nv_add_u32 v35, s28, v34\nv_xor_b32 v35, v35, v33\nv_lshl_add_u32 v{VW+p}, v35, 4, v32")
    VSUM, VSQ, VT = 26, 27, 30
    ACC = 36; OACC = 84; ONE = 92; SMF = 232
    a(f"v_mov_b32 v{VSUM}, 0\nv_mov_b32 v{VSQ}, 0")
    a(f"v_cmp_eq_u32 vcc, 0, v1\nv_mov_b32 v32, {ONES:#x}\ns_nop 1\nv_cndmask_b32 v{ONE}, 0, v32, vcc")
    for e in range(1, 4): a(f"v_mov_b32 v{ONE+e}, v{ONE}")
    STAT = FX; CS = STAT + 1280; PK = FW0 + 3*FWS
    E = dict(CSR=160, STR=168, L16=171, PK=172)
    t0, t1, t2, t3 = 224, 225, 226, 227
    SU = [f"v_lshlrev_b32 v{t0}, 4, v2", f"v_lshlrev_b32 v{t1}, 3, v1", f"v_lshlrev_b32 v{E['L16']}, 4, v0"]
    for p in range(6): SU.append(f"s_lshl_b32 s28, s{72+p}, 6\ns_add_u32 s28, s28, {CS}\nv_add_u32 v{E['CSR']+p}, s28, v{t0}")
    for i in range(2):
        SU.append(f"s_lshl_b32 s28, s{70+i}, 7\ns_add_u32 s28, s28, {STAT}\nv_add_u32 v{E['STR']+i}, s28, v{t1}")
        SU.append(f"s_lshl_b32 s28, s12, 3\ns_add_u32 s28, s28, s{70+i}\ns_mul_i32 s28, s28, 69632\ns_mul_i32 s29, s13, 6144\ns_add_u32 s{78+i}, s28, s29")
    SU.append(f"s_mov_b32 s80, s8\ns_and_b32 s81, s9, 0xffff\ns_mov_b32 s82, {A2_SIZE}\ns_mov_b32 s83, 0x20000")
    SU.append("s_lshl_b32 s64, s13, 4\ns_add_u32 s64, s64, s12\ns_cmp_lt_u32 s64, 68\ns_cselect_b32 s68, 5, 0")
    SU.append("s_sub_u32 s28, s64, 48\ns_mul_i32 s29, s28, 52\ns_lshr_b32 s29, s29, 8\ns_mul_i32 s30, s29, 5\ns_sub_u32 s30, s28, s30\n"
              "s_lshr_b32 s31, s30, 1\ns_mul_i32 s31, s31, 80\ns_and_b32 s33, s30, 1\ns_lshl_b32 s33, s33, 3\ns_add_u32 s31, s31, s33\n"
              "s_cmp_eq_u32 s30, 4\ns_cselect_b32 s31, 16, s31\ns_cselect_b32 s67, 80, 4\ns_mul_i32 s65, s29, 160\ns_add_u32 s65, s65, s31\ns_mov_b32 s66, 20\n"
              "s_lshl_b32 s28, s64, 5\ns_cmp_lt_u32 s64, 48\ns_cselect_b32 s65, s28, s65\ns_cselect_b32 s66, 4, s66\ns_cselect_b32 s67, 16, s67\n"
              f"s_cselect_b32 s40, s58, s60\ns_cselect_b32 s41, s59, s61\ns_and_b32 s41, s41, 0xffff\ns_cmp_lt_u32 s64, 48\ns_mov_b32 s42, {640*640*2}\ns_cselect_b32 s42, {1536*640*2}, s42\ns_mov_b32 s43, 0x20000")
    for i in range(5):
        SU.append(f"s_add_u32 s28, s14, {8*i}\ns_lshl_b32 s31, s28, 6\nv_add_u32 v{t0}, s31, v0")
        SU += [f"v_mul_u32_u24 v{t1}, 3277, v{t0}", f"v_lshrrev_b32 v{t1}, 18, v{t1}", f"v_mul_u32_u24 v{t2}, 80, v{t1}", f"v_sub_u32 v{t2}, v{t0}, v{t2}",
               f"v_lshrrev_b32 v{t3}, 4, v{t1}", f"v_mul_lo_u32 v{t3}, v{t3}, s67", f"v_bfe_u32 v{t0}, v{t1}, 2, 2", f"v_mul_lo_u32 v{t0}, v{t0}, s66",
               f"v_and_b32 v{t1}, 3, v{t1}", f"v_add3_u32 v{t3}, v{t3}, v{t0}, v{t1}", f"v_add_u32 v{t3}, s65, v{t3}",
               f"v_mul_u32_u24 v{t3}, 1280, v{t3}", f"v_lshl_add_u32 v{174+i}, v{t2}, 4, v{t3}"]
    SU.append(f"s_add_u32 s44, s8, {W2F_OFF}\ns_addc_u32 s45, s9, 0\ns_and_b32 s45, s45, 0xffff\ns_mov_b32 s46, {W2F_SIZE}\ns_mov_b32 s47, 0x20000")
    SU += [f"v_lshrrev_b32 v{t0}, 2, v0", f"v_mul_u32_u24 v{t0}, 1280, v{t0}", f"s_mul_i32 s28, s14, 160\ns_add_u32 s28, s28, {PK}\nv_add_u32 v{t0}, s28, v{t0}",
           f"v_lshl_add_u32 v{E['PK']}, v9, 4, v{t0}", f"v_lshl_add_u32 v{E['PK']+1}, v9, 3, v{t0}",
           "s_mul_i32 s28, s14, 348160\ns_mul_i32 s29, s64, 5120\ns_add_u32 s69, s28, s29"]
    SU.append("s_cmp_eq_u32 s68, 5\ns_cselect_b32 s100, -1, 0\ns_cselect_b32 s101, -1, 0")
    allp = PRE + SU
    nl = [x.count("\n")+1 for x in allp]; tot = sum(nl); acc = 0; k = 0
    for x, n_ in zip(allp, nl):
        while not LAZY and k < 5 and acc >= (k*tot)//5: one_dma(D1[k]); k += 1
        a(x); acc += n_
    while not LAZY and k < 5: one_dma(D1[k]); k += 1
    nonce(a)
    SUH = [[] for _ in range(2*NST)]
    SET = [96, 128]
    def read_list(st, stg, ks):
        B = SET[st]; R = []; sl = stg % 3
        tr = lambda p: [f"ds_read_b64_tr_b16 v[{B+8+4*p+2*h}:{B+9+4*p+2*h}], v{VW+p} offset:{sl*FWS+(32*ks+8*h)*384}" for h in range(2)]
        R += tr(0); R.append(f"ds_read_b128 v[{B}:{B+3}], v{VX+ks} offset:{sl*FX}"); R.append(f"ds_read_b128 v[{B+4}:{B+7}], v{VX+2+ks} offset:{sl*FX}")
        for p in range(1, 6): R += tr(p)
        return R
    def mfma_list(st, first):
        B = SET[st]; M = []
        c = lambda r: "0" if first else f"v[{r}:{r+3}]"
        for p in range(6):
            for i in range(2):
                r = ACC+24*i+4*p
                M.append(f"v_mfma_f32_16x16x32_bf16 v[{r}:{r+3}], v[{B+8+4*p}:{B+11+4*p}], v[{B+4*i}:{B+4*i+3}], {c(r)}")
            if p < 2:
                r = OACC+4*p
                M.append(f"v_mfma_f32_16x16x32_bf16 v[{r}:{r+3}], v[{B+8+4*p}:{B+11+4*p}], v[{ONE}:{ONE+3}], {c(r)}")
        M.insert(1, f"v_mfma_f32_16x16x32_bf16 v[{SMF}:{SMF+3}], v[{ONE}:{ONE+3}], v[{B}:{B+3}], {c(SMF)}")
        return M
    a(f"s_waitcnt vmcnt({0 if LAZY else 5})\ns_barrier")
    gen.stamp(a); gen.rstamp(a, 60)
    L = Asm()
    emit(L, read_list(0, 0, 0))
    fl = gen.OPTS.get("stf", "")
    PR = 180
    vq = ["S0"]*5 + ([] if LAZY else ["S1"]*5)
    def need(tag):
        idx = max(i for i, x in enumerate(vq) if x == tag)
        return len(vq) - 1 - idx
    for s in range(NST):
        last = s == NST-1
        Da = (dma_list(2) if s == 0 else dma_list(s+2)[2:]) if s+2 < NST else []
        Db = dma_list(s+3)[:2] if s+3 < NST else []
        ta = [f"S{s+2}"]*len(Da); tb = [f"S{s+3}"]*len(Db)
        if LAZY and s == 0: Da = dma_list(1); Db = dma_list(2) + Db; ta = ["S1"]*5; tb = ["S2"]*5 + tb
        Xa = list(SUH[2*s]); Xb = list(SUH[2*s+1])
        if s == 3:
            for i in range(5):
                Db.append((f"s_add_u32 s28, s14, {8*i}\ns_lshl_b32 s33, s28, 10\ns_add_u32 m0, s33, {PK}", f"s_mov_b64 exec, s[100:101]\nbuffer_load_dwordx4 v{174+i}, s[40:43], 0 offen lds\ns_mov_b64 exec, -1"))
            tb += ["P"]*5
        Ra = read_list(1, s, 1)
        if s == 6:
            for nt in range(5):
                for h in range(2):
                    if nt < 4: Ra.append(f"ds_read_b64_tr_b16 v[{PR+4*nt+2*h}:{PR+4*nt+2*h+1}], v{E['PK']} offset:{h*16*1280 + 64*(nt>>1) + 8*(nt&1)}")
                    else: Ra.append(f"ds_read_b64_tr_b16 v[{PR+4*nt+2*h}:{PR+4*nt+2*h+1}], v{E['PK']+1} offset:{h*16*1280 + 128}")
        emit(L, sched(mfma_list(0, s == 0), R=Ra, V=sq_valu(SET[0], VSQ, VT), D=Da, lead=0, X=Xa))
        vq += ta
        if not last: L(f"s_waitcnt vmcnt({need(f'S{s+1}')})\ns_barrier")
        if gen.OPTS.get("stamps") and not gen.OPTS.get("nostage"):
            L("s_waitcnt lgkmcnt(0)"); L("; STAMP")
        if gen.FUSED and s == 8:
            lab = gen.uniq("pp")
            L(f"s_cmp_eq_u32 s68, 5\ns_cbranch_scc0 {lab}\ns_cmp_eq_u32 s14, 0\ns_cbranch_scc0 {lab}")
            L(nonce_get_text(52))
            L(f"s_add_u32 s28, s8, {FLAG_OFF}\ns_addc_u32 s29, s9, 0\ns_and_b32 s29, s29, 0xffff\ns_mov_b32 s30, 8192\ns_mov_b32 s31, 0x20000")
            L(f"s_lshl_b32 s33, s64, 2\ns_add_u32 s33, s33, 4096\nv_mov_b32 v254, s33\nv_mov_b32 v253, s52\ns_mov_b64 exec, 1\nbuffer_store_dword v253, v254, s[28:31], 0 offen sc1\ns_mov_b64 exec, -1\n{lab}:")
        V = sq_valu(SET[1], VSQ, VT)
        if last: V = V + reduce_g_list(VSQ, VT+1) + [f"v_mov_b32 v{VSUM}, v{SMF}"] + finish_stats_list(VSUM, VSQ, VT)
        if s == 6:
            for nt in range(5):
                Xb.append(f"s_add_u32 s28, s69, {nt*1024}\ns_mov_b64 exec, s[100:101]\nbuffer_store_dwordx4 v[{PR+4*nt}:{PR+4*nt+3}], v{E['L16']}, s[44:47], s28 offen {fl}\ns_mov_b64 exec, -1")
        if s == 5 and gen.FUSED: Xb.append(nonce_load_text())
        emit(L, sched(mfma_list(1, False), R=read_list(0, s+1, 0) if not last else [], V=V, D=Db, lead=1, X=Xb))
        vq += tb
        if s == 6: vq += ["PS"]*5
    lines, q = auto_lgkm(L.lines)
    for l in lines:
        if l == "; STAMP": gen.stamp(a)
        else: a(l)
    gen.stamp(a); gen.rstamp(a, 61)
    a("s_mov_b64 exec, 0xffff")
    a(f"ds_write_b64 v{E['STR']}, v[{VSUM}:{VSQ}]")
    a("s_mov_b32 exec_lo, 0x00010001\ns_mov_b32 exec_hi, 0x00010001")
    for p in range(2): a(f"ds_write_b128 v{E['CSR']+p}, v[{OACC+4*p}:{OACC+4*p+3}]")
    a("s_mov_b64 exec, -1")
    if gen.FUSED: a(packflags_load_text())
    a("s_waitcnt lgkmcnt(0)\ns_barrier")
    gen.stamp(a)
    ST = 96; CSR = 100
    for i in range(2): a(f"ds_read_b64 v[{ST+2*i}:{ST+2*i+1}], v{E['STR']+i}")
    for p in range(6): a(f"ds_read_b128 v[{CSR+4*p}:{CSR+4*p+3}], v{E['CSR']+p}")
    a("s_waitcnt lgkmcnt(0)")
    T0 = 148
    for i in range(2):
        st = ST+2*i
        for q in range(3):
            r0 = ACC+24*i+8*q
            cs0 = CSR+8*q
            T = T0
            for e in range(0, 8, 2): a(f"v_pk_mul_f32 v[{T+e}:{T+e+1}], v[{cs0+e}:{cs0+e+1}], v[{st}:{st+1}] op_sel:[0,1] op_sel_hi:[1,1]")
            for e in range(0, 8, 2): a(f"v_pk_fma_f32 v[{r0+e}:{r0+e+1}], v[{r0+e}:{r0+e+1}], v[{st}:{st+1}], v[{T+e}:{T+e+1}] op_sel_hi:[1,0,1] neg_lo:[0,0,1] neg_hi:[0,0,1]")
            for e in range(8): a(f"v_mul_f32 v{T+e}, {f2u(-LOG2E):#x}, v{r0+e}")
            for e in range(8): a(f"v_exp_f32 v{T+e}, v{T+e}")
            for e in range(8): a(f"v_add_f32 v{T+e}, 1.0, v{T+e}")
            for e in range(8): a(f"v_rcp_f32 v{T+e}, v{T+e}")
            for e in range(8): a(f"v_mul_f32 v{r0+e}, v{r0+e}, v{T+e}")
            D = T0+8+4*(q & 1)
            a(f"v_cvt_pk_bf16_f32 v{D}, v{r0}, v{r0+1}\nv_cvt_pk_bf16_f32 v{D+1}, v{r0+2}, v{r0+3}\nv_cvt_pk_bf16_f32 v{D+2}, v{r0+4}, v{r0+5}\nv_cvt_pk_bf16_f32 v{D+3}, v{r0+6}, v{r0+7}")
            a(f"s_lshl_b32 s28, s{72+2*q}, 9\ns_add_u32 s28, s28, s{78+i}")
            a(f"buffer_store_dwordx4 v[{D}:{D+3}], v{E['L16']}, s[80:83], s28 offen {fl}")
```

```python
from gen import *
import gen
from asmlib import auto_lgkm, Asm

def p2_lds():
    R = gen.OPTS.get("lag2", 3)
    return R*(20480+16384)

def gen_p2_body(a, WS, XP, OUT, fused):
    O = gen.OPTS
    R = O.get("lag2", 3); NS = 17
    WSL = 20480; ASL = 16384; A0 = R*WSL
    lf = O.get("l2f", "sc1" if fused else "")
    a("s_and_b32 s10, s2, 7\ns_lshr_b32 s11, s2, 3")
    a("s_lshr_b32 s12, s10, 1\ns_lshl_b32 s12, s12, 3\ns_and_b32 s13, s11, 7\ns_add_u32 s12, s12, s13")
    a("s_and_b32 s13, s10, 1\ns_lshl_b32 s13, s13, 2\ns_lshr_b32 s15, s11, 3\ns_add_u32 s13, s13, s15")
    a("v_lshlrev_b32 v2, 4, v0")
    a("s_and_b32 s15, s14, 3\ns_lshr_b32 s16, s14, 2")
    a("s_lshl_b32 s17, s12, 2\ns_add_u32 s17, s17, s15")
    a("s_mul_i32 s18, s17, 69632\ns_lshl_b32 s19, s16, 11\ns_add_u32 s18, s18, s19")
    a("s_mul_i32 s19, s13, 348160")
    a("s_lshl_b32 s20, s14, 10\ns_lshl_b32 s23, s16, 13\ns_add_u32 s20, s20, s23")
    a("s_add_u32 s21, s20, 4096\ns_add_u32 s22, s20, 8192")
    a(f"s_lshl_b32 s26, s14, 11\ns_add_u32 s26, s26, {A0}")
    a("s_add_u32 s23, s19, s20\ns_add_u32 s24, s19, s21\ns_add_u32 s25, s19, s22")
    if not fused: a("s_waitcnt lgkmcnt(0)")
    srd(a, 28, WS, A2_SIZE); srd(a, 32, WS, W2F_SIZE, W2F_OFF)
    if not fused and O.get("stamps"): gen.stamp_init(a, WS, 1 << 20); gen.rstamp(a, 62)
    gen.stamp(a)
    a("s_lshr_b32 s38, s12, 1\ns_lshl_b32 s38, s38, 7\ns_and_b32 s39, s12, 1\ns_add_u32 s38, s38, s39\ns_lshl_b32 s39, s15, 5\ns_add_u32 s38, s38, s39")
    a("v_and_b32 v3, 15, v0\nv_lshlrev_b32 v3, 1, v3\nv_add_u32 v3, s38, v3\nv_mul_u32_u24 v3, 1280, v3\nv_lshrrev_b32 v4, 4, v0")
    a("s_mul_i32 s39, s13, 160\nv_add_u32 v3, s39, v3")
    a("v_lshlrev_b32 v5, 4, v4\nv_add_u32 v5, v3, v5\ns_lshl_b32 s39, s16, 6\nv_add_u32 v5, s39, v5")
    a("v_lshlrev_b32 v6, 3, v4\nv_add_u32 v6, v3, v6\nv_add_u32 v6, 128, v6")
    srd(a, 40, XP, 2621440); srd(a, 44, OUT, 2621440)
    a("v_mov_b32 v14, v2")
    if R*WSL > 65536: a(f"v_add_u32 v7, {3*WSL}, v2")
    a(f"s_lshl_b32 s39, s15, 11\ns_add_u32 s39, s39, {A0}\nv_add_u32 v15, s39, v2")
    if fused:
        a("s_lshr_b32 s38, s12, 1\ns_lshl_b32 s38, s38, 7\nv_and_b32 v21, 7, v0\nv_lshlrev_b32 v21, 2, v21\nv_add_u32 v21, s38, v21\nv_add_u32 v20, 32, v21")
    def dma_list(stg, nw):
        sl = stg % R
        D = [(f"s_add_u32 m0, s26, {sl*ASL}", f"buffer_load_dwordx4 v2, s[28:31], s18 offen {lf} lds\nbuffer_load_dwordx4 v2, s[28:31], s18 offen offset:1024 {lf} lds\ns_add_u32 s18, s18, 4096"),
             (f"s_add_u32 m0, s20, {sl*WSL}", f"buffer_load_dwordx4 v2, s[32:35], s23 offen {lf} lds\ns_add_u32 s23, s23, 20480"),
             (f"s_add_u32 m0, s21, {sl*WSL}", f"buffer_load_dwordx4 v2, s[32:35], s24 offen {lf} lds\ns_add_u32 s24, s24, 20480")]
        if nw == 3: D.append((f"s_add_u32 m0, s22, {sl*WSL}", f"buffer_load_dwordx4 v2, s[32:35], s25 offen {lf} lds\ns_add_u32 s25, s25, 20480"))
        return D
    SETS = [40, 104]
    def wread(r, sl, off):
        o = sl*WSL + off
        return f"ds_read_b128 v[{r}:{r+3}], v14 offset:{o}" if o < 65536 - 1024 or sl < 3 else f"ds_read_b128 v[{r}:{r+3}], v7 offset:{o-3*WSL}"
    def read_list(st, stg, tiles):
        B = SETS[st]; Rl = []; sl = stg % R
        for ks in range(4):
            Rl.append(f"ds_read_b128 v[{B+4*ks}:{B+4*ks+3}], v15 offset:{sl*ASL+(ks>>1)*8192+(ks&1)*1024}")
            for i, nt in enumerate(tiles):
                Rl.append(wread(B+16+4*(ks*len(tiles)+i), sl, ks*5120+nt*1024))
        return Rl
    def mfma_list(st, tiles, acc, first):
        B = SETS[st]; M = []
        for ks in range(4):
            for i, nt in enumerate(tiles):
                r = B+16+4*(ks*len(tiles)+i)
                c = "0" if (first and ks == 0) else f"v[{acc+4*i}:{acc+4*i+3}]"
                M.append(f"v_mfma_f32_16x16x32_bf16 v[{acc+4*i}:{acc+4*i+3}], v[{r}:{r+3}], v[{B+4*ks}:{B+4*ks+3}], {c}")
        return M
    def merge(M, Rl, D):
        n = len(M); out = []
        items = list(Rl)
        for t, d in enumerate(D):
            items.insert(min(len(items), (t*(len(Rl)+len(D)))//max(len(D), 1)), d)
        k = len(items); it = 0
        for i in range(n):
            tgt = ((i+1)*k + n - 1)//n
            grp = items[it:tgt]; it = tgt
            pre = [g[0] for g in grp if isinstance(g, tuple)]
            assert len(pre) <= 1
            out += pre; out.append(M[i])
            out += [g[1] if isinstance(g, tuple) else g for g in grp]
        return out
    def path(tag, tiles, nw):
        NI = 2 + nw
        vq = []
        def need(tagname):
            idx = max(i for i, x in enumerate(vq) if x == tagname)
            return len(vq) - 1 - idx
        if not fused:
            for s in range(R):
                for pre, ld in dma_list(s, nw): a(pre); a("s_nop 0"); a(ld)
                vq += [f"S{s}"]*NI
        else:
            a(f"s_cmp_eq_u32 s14, 0\ns_cbranch_scc0 fz_w_{tag}\nbuffer_load_dword v24, v20, s[48:51], 0 offen sc1")
            a.label(f"fz_w_{tag}")
            for s in range(R):
                for pre, ld in dma_list(s, nw)[1:]: a(pre); a("s_nop 0"); a(ld)
                vq += [f"S{s}"]*nw
            a(f"s_cmp_eq_u32 s14, 0\ns_cbranch_scc0 fz_go_{tag}\ns_waitcnt vmcnt({R*nw})\ns_mov_b32 s39, 0")
            a.label(f"fz_poll_{tag}")
            a(f"v_cmp_ne_u32 vcc, s52, v24\ns_nop 4\ns_cmp_eq_u64 vcc, 0\ns_cbranch_scc1 fz_go_{tag}")
            a(f"s_sleep {O.get('slp', 2)}\nbuffer_load_dword v24, v20, s[48:51], 0 offen sc1\ns_waitcnt vmcnt(0)\ns_add_u32 s39, s39, 1\ns_cmp_lt_u32 s39, 0x20000\ns_cbranch_scc1 fz_poll_{tag}")
            a.label(f"fz_go_{tag}")
            a("s_barrier")
            gen.stamp(a)
            for s in range(R):
                pre, ld = dma_list(s, nw)[0]
                a(pre); a("s_nop 0"); a(ld)
                vq += [f"S{s}"]*2
        a("buffer_load_dwordx4 v[8:11], v5, s[40:43], 0 offen\nbuffer_load_dwordx2 v[12:13], v6, s[40:43], 0 offen")
        vq += ["x", "x"]
        if fused:
            a("s_cmp_eq_u32 s53, 1\ns_cselect_b64 exec, -1, 0")
            a(gen.DEFERRED_O)
            a("s_mov_b64 exec, -1")
            vq += ["O"]*3
        a(f"s_waitcnt vmcnt({need('S0')})\ns_barrier")
        gen.stamp(a)
        L = Asm()
        for x in read_list(0, 0, tiles): L(x)
        SCHK = 12 - R
        for s in range(NS):
            st = s & 1
            if s+1 < NS: L(f"s_waitcnt vmcnt({need(f'S{s+1}')})\ns_barrier")
            if O.get("stamps") and not O.get("nostage"): L("s_waitcnt lgkmcnt(0)"); L("; STAMP")
            if fused and s == R-1:
                assert vq.index(f"S{s+1}") > vq.index("O")
                L(f"s_cmp_eq_u32 s53, 1\ns_cbranch_scc0 fz_np_{tag}\ns_cmp_eq_u32 s14, 0\ns_cbranch_scc0 fz_np_{tag}")
                L(f"v_mov_b32 v22, s66\nv_mov_b32 v23, s52\ns_mov_b64 exec, 1\nbuffer_store_dword v23, v22, s[48:51], 0 offen sc1\ns_mov_b64 exec, -1")
                L(f"fz_np_{tag}:")
            if fused and s == SCHK:
                L(f"s_waitcnt vmcnt({need('F')})")
                L(f"v_cmp_ne_u32 vcc, s52, v24\ns_nop 4\ns_cmp_eq_u64 vcc, 0\ns_cbranch_scc1 fz_ok_{tag}\ns_mov_b32 s39, 0")
                L(f"fz_pl_{tag}:")
                L(f"s_sleep 4\nbuffer_load_dword v24, v21, s[48:51], 0 offen sc1\ns_waitcnt vmcnt(0)\nv_cmp_ne_u32 vcc, s52, v24\ns_nop 4\ns_cmp_eq_u64 vcc, 0\ns_cbranch_scc1 fz_ok_{tag}")
                L(f"s_add_u32 s39, s39, 1\ns_cmp_lt_u32 s39, 0x20000\ns_cbranch_scc1 fz_pl_{tag}")
                L(f"fz_ok_{tag}:")
            acc = 28 if s < 12 else 16
            M = mfma_list(st, tiles, acc, s == 0 or s == 12)
            Rl = read_list(1-st, s+1, tiles) if s+1 < NS else []
            D = dma_list(s+R, nw) if s+R < NS else []
            for x in merge(M, Rl, D): L(x)
            if D: vq += [f"S{s+R}"]*NI
            if fused and s == SCHK-2:
                L("buffer_load_dword v24, v21, s[48:51], 0 offen sc1"); vq.append("F")
        lines, q = auto_lgkm(L.lines)
        for l in lines:
            if l == "; STAMP": gen.stamp(a)
            else: a(l)
        gen.stamp(a)
    def fin(S, F, X, n):
        T = 40
        for e in range(n): a(f"v_mul_f32 v{T+e}, {f2u(-LOG2E):#x}, v{F+e}")
        for e in range(n): a(f"v_exp_f32 v{T+e}, v{T+e}")
        for e in range(n): a(f"v_mul_f32 v{F+e}, v{F+e}, v{S+e}")
        for e in range(0, n, 2):
            a(f"v_lshlrev_b32 v{T+16+e}, 16, v{X+e//2}\nv_and_b32 v{T+17+e}, 0xffff0000, v{X+e//2}")
        for e in range(n): a(f"v_add_f32 v{T+e}, 1.0, v{T+e}")
        for e in range(n): a(f"v_rcp_f32 v{T+e}, v{T+e}")
        for e in range(n): a(f"v_fmac_f32 v{T+16+e}, v{F+e}, v{T+e}")
        for e in range(0, n, 2): a(f"v_cvt_pk_bf16_f32 v{X+e//2}, v{T+16+e}, v{T+17+e}")
    of = O.get("of", "")
    a("s_cmp_eq_u32 s16, 0\ns_cbranch_scc0 p2_path1")
    path("c0", [0, 1, 4], 3)
    fin(16, 28, 8, 12)
    a(f"buffer_store_dwordx4 v[8:11], v5, s[44:47], 0 offen {of}\nbuffer_store_dwordx2 v[12:13], v6, s[44:47], 0 offen {of}")
    a("s_branch p2_end")
    a.label("p2_path1")
    path("c1", [2, 3], 2)
    fin(16, 28, 8, 8)
    a(f"buffer_store_dwordx4 v[8:11], v5, s[44:47], 0 offen {of}")
    a.label("p2_end")

def gen_p2(a, name="p2_kernel", dbg=False):
    O = gen.OPTS
    a(f".globl {name}\n.p2align 8\n.type {name},@function\n{name}:")
    a("s_cmp_ge_u32 s2, 256\ns_cbranch_scc1 p2_done")
    a("s_load_dwordx2 s[4:5], s[0:1], 64\ns_load_dwordx2 s[6:7], s[0:1], 0\ns_load_dwordx2 s[8:9], s[0:1], 48")
    if dbg or O.get("stamps"): a("s_memtime s[62:63]")
    a("v_lshrrev_b32 v1, 6, v0\nv_and_b32 v0, 63, v0\ns_nop 0\nv_readfirstlane_b32 s14, v1")
    gen_p2_body(a, 4, 6, 8, False)
    gen.stamp(a); gen.stamp_dump(a, 14)
    a.label("p2_done")
    a("s_endpgm")
```

```python
import sys, struct
from asmlib import Asm, fix_hazards

KN = "recurrent_scan__sliding_local_dilated__dense_activation_silu__prompt"
A2_OFF  = 0
A2_SIZE = 128*68*1024
W2F_OFF = 16 << 20
W2F_SIZE = 8*68*5*1024
FLAG_OFF = 24 << 20
def f2u(x): return struct.unpack("<I", struct.pack("<f", x))[0]
LOG2E = 1.4426950408889634

def srd(a, d, lo, nbytes, off=None):
    if off:
        a(f"s_add_u32 s{d}, s{lo}, {off}\ns_addc_u32 s{d+1}, s{lo+1}, 0\ns_and_b32 s{d+1}, s{d+1}, 0xffff")
    else:
        a(f"s_mov_b32 s{d}, s{lo}\ns_and_b32 s{d+1}, s{lo+1}, 0xffff")
    a(f"s_mov_b32 s{d+2}, {nbytes}\ns_mov_b32 s{d+3}, 0x20000")


P2_SLOT = 36864
P2_NSLOT = 4
P2_LDS = P2_SLOT*P2_NSLOT
OPTS = {}
FUSED = False
_u = [0]
last_uniq = ''
def uniq(p):
    global last_uniq
    _u[0] += 1; last_uniq = f'{p}{_u[0]}'; return last_uniq
STAMP_OFF = 64 << 20
def stamp_init(a, sreg_ws_lo, koff=0):
    a(f"s_add_u32 s88, s{sreg_ws_lo}, {STAMP_OFF+koff}\ns_addc_u32 s89, s{sreg_ws_lo+1}, 0\ns_and_b32 s89, s89, 0xffff\ns_mov_b32 s90, 0x100000\ns_mov_b32 s91, 0x20000\nv_mov_b32 v250, 0\ns_mov_b32 s92, 0")
def rstamp(a, lane):
    if not OPTS.get("stamps"): return
    a(f"s_memrealtime s[94:95]\ns_waitcnt lgkmcnt(0)\nv_mov_b32 v251, s94\nv_cmp_eq_u32 vcc, {lane}, v0\nv_cndmask_b32 v250, v250, v251, vcc")
def stamp(a):
    if not OPTS.get("stamps"): return
    if OPTS.get("nostage") and getattr(a, "instage", False): return
    a("s_memtime s[94:95]\ns_waitcnt lgkmcnt(0)\ns_sub_u32 s94, s94, s62\nv_mov_b32 v251, s94\nv_cmp_eq_u32 vcc, s92, v0\nv_cndmask_b32 v250, v250, v251, vcc\ns_add_u32 s92, s92, 1")
def stamp_dump(a, swave):
    if not OPTS.get("stamps"): return
    rstamp(a, 63)
    a(f"s_lshl_b32 s93, s2, 3\ns_add_u32 s93, s93, s{swave}\ns_lshl_b32 s93, s93, 8\nv_lshlrev_b32 v251, 2, v0\nbuffer_store_dword v250, v251, s[88:91], s93 offen")
def kd(name, nv=256, ns=102):
    return f""".p2align 6
.amdhsa_kernel {name}
  .amdhsa_next_free_vgpr {nv}
  .amdhsa_next_free_sgpr {ns}
  .amdhsa_accum_offset {min(256,(nv+3)//4*4)}
  .amdhsa_group_segment_fixed_size 0
  .amdhsa_kernarg_size 72
  .amdhsa_user_sgpr_count 2
  .amdhsa_user_sgpr_kernarg_segment_ptr 1
  .amdhsa_system_sgpr_workgroup_id_x 1
.end_amdhsa_kernel"""

def build(kernels, out, dbg=False):
    hdr = []
    body = Asm()
    kds = []
    for k in kernels:
        if k == "p2":
            from gen_p2 import gen_p2, p2_lds
            hdr.append(f"; @launch kernel=p2_kernel grid=(256,1,1) block=(512,1,1) lds={p2_lds()}")
            gen_p2(body, dbg=dbg); kds.append(kd("p2_kernel", 256 if OPTS.get("stamps") else 168))
        elif k == "fused":
            from gen_p1 import gen_p1, P1_LDS
            hdr.append(f"; @launch grid=(256,1,1) block=(512,1,1) lds={P1_LDS}")
            gen_p1(body, name=KN + "_kernel", dbg=dbg, fused=True); kds.append(kd(KN + "_kernel", 256))
        elif k == "p1":
            from gen_p1 import gen_p1, P1_LDS
            hdr.append(f"; @launch kernel=p1_kernel grid=(256,1,1) block=(512,1,1) lds={P1_LDS}")
            gen_p1(body, dbg=dbg); kds.append(kd("p1_kernel", 256))
    lines = fix_hazards(body.lines)
    txt = "\n".join(hdr) + '\n.amdgcn_target "amdgcn-amd-amdhsa--gfx950"\n.text\n' + "\n".join(lines) + '\n.section .rodata,"a"\n' + "\n".join(kds) + "\n"
    open(out, "w").write(txt)

def main():
    out = sys.argv[1]; ks = sys.argv[2].split(","); dbg = "dbg" in sys.argv[3:]
    for o in sys.argv[3:]:
        if "=" in o:
            k, v = o.split("="); OPTS[k] = int(v) if v.lstrip("-").isdigit() else v.replace("+", " ")
        else: OPTS[o] = 1
    build(ks, out, dbg)

if __name__ == "__main__":
    import gen
    gen.main()
```
